```python
import torch

def _softmax(x, axis=-1):
    return torch.softmax(x, dim=axis)
def _gelu(x):
    return torch.nn.functional.gelu(x, approximate="tanh")
def _silu(x):
    return torch.nn.functional.silu(x)
def _sigmoid(x):
    return torch.sigmoid(x)
def _layernorm(x, axis=-1, eps=1e-5):
    m = x.mean(dim=axis, keepdim=True)
    v = x.var(dim=axis, keepdim=True, unbiased=False)
    return (x - m) / torch.sqrt(v + eps)
def _scatter_add(tgt, idx, src, axis=0):
    return tgt.clone().index_add_(axis, idx, src)
def _segment_sum(src, seg, n):
    out = torch.zeros((n,) + src.shape[1:], dtype=src.dtype)
    return out.index_add_(0, seg, src)
def _pad(x, pw):
    flat = tuple(v for pair in reversed(pw) for v in pair)
    return torch.nn.functional.pad(x, flat)

kernel_name = 'interleave_layers__sliding_local_dilated__ssm_conv_s4d__prompt'

def setup_inputs():

    _w = (lambda a: (lambda t: t.to(torch.bfloat16) if t.is_floating_point() else t)(torch.as_tensor(a)))
    def _A_setup():
        B, S, D = 1, 2048, 512
        return {
            "x": _w((lambda *s: torch.randn(*s, dtype=torch.bfloat16) * 0.05)(B, S, D)),
            "wqkv": _w((lambda *s: torch.randn(*s, dtype=torch.bfloat16) * 0.05)(D, 3 * D)),
            "wo": _w((lambda *s: torch.randn(*s, dtype=torch.bfloat16) * 0.05)(D, D)),
        }
    _A_in = _A_setup()

    def _B_setup():
        Bsz, L, D, N = 1, 2048, 512, 128
        return {
            "u": _w((lambda *s: torch.randn(*s, dtype=torch.bfloat16) * 0.05)(Bsz, L, D)),
            "log_A_real": _w((lambda *s: torch.randn(*s, dtype=torch.bfloat16) * 6.4)(D, N) * 0.5),
            "A_imag": _w((lambda *s: torch.randn(*s, dtype=torch.bfloat16) * 0.1)(D, N) * 3.14),
            "C_real": _w((lambda *s: torch.randn(*s, dtype=torch.bfloat16) * 0.1)(D, N) / N ** 0.5),
            "C_imag": _w((lambda *s: torch.randn(*s, dtype=torch.bfloat16) * 0.1)(D, N) / N ** 0.5),
            "log_dt": _w((lambda *s: torch.randn(*s, dtype=torch.bfloat16) * 0.1)(D) * 0.5 - 4.0),
            "D_skip": _w((lambda *s: torch.randn(*s, dtype=torch.bfloat16) * 0.1)(D)),
        }
    _B_in = _B_setup()

    return {
        "A_x": _A_in["x"],
        "A_wqkv": _A_in["wqkv"],
        "A_wo": _A_in["wo"],
        "B_u": _B_in["u"],
        "B_log_A_real": _B_in["log_A_real"],
        "B_A_imag": _B_in["A_imag"],
        "B_C_real": _B_in["C_real"],
        "B_C_imag": _B_in["C_imag"],
        "B_log_dt": _B_in["log_dt"],
        "B_D_skip": _B_in["D_skip"],
    }

def reference(A_x, A_wqkv, A_wo, B_u, B_log_A_real, B_A_imag, B_C_real, B_C_imag, B_log_dt, B_D_skip):
    def _A_ref(x, wqkv, wo):
        B, S, D = x.shape
        H = 32; Dh = D // H
        W, dil = 8, 2
        qkv = (lambda x, *d: x.permute(*d))((x @ wqkv).reshape(B, S, 3, H, Dh), 2, 0, 3, 1, 4)
        q, k, v = qkv[0], qkv[1], qkv[2]
        scale = Dh ** -0.5
        pos = torch.arange(S)
        off = torch.arange(W) * dil
        idx = pos[:, None] - off[None, :]
        mask = idx >= 0
        idx_c = torch.where(mask, idx, 0).reshape(-1)
        kg = k[:, :, idx_c, :].reshape(B, H, S, W, Dh)
        vg = v[:, :, idx_c, :].reshape(B, H, S, W, Dh)
        logits = torch.einsum("bhsd,bhswd->bhsw", q, kg) * scale
        logits = torch.where(mask[None, None, :, :], logits, -1e9)
        attn = _softmax(logits, axis=-1)
        o = torch.einsum("bhsw,bhswd->bhsd", attn, vg)
        return (lambda x, *d: x.permute(*d))(o, 0, 2, 1, 3).reshape(B, S, D) @ wo

    def _B_ref(u, log_A_real, A_imag, C_real, C_imag, log_dt, D_skip):
        L = u.shape[1]
        dt = torch.exp(log_dt)
        A = -torch.exp(log_A_real) + 1j * A_imag
        C = (C_real + 1j * C_imag) * dt[:, None]
        pos = (lambda x, dt: x.to(dt))(torch.arange(L), log_dt.dtype)
        P = torch.exp((A * dt[:, None])[:, :, None] * pos[None, None, :])
        K = 2.0 * torch.einsum("dn,dnl->dl", C, P).real
        L2 = 2 * L
        u_t = (lambda x, *d: x.permute(*d))(u, 0, 2, 1)
        Kf = (lambda x, *a, **k: torch.fft.rfft(x.float(), *a, **k))(K, L2)
        Uf = (lambda x, *a, **k: torch.fft.rfft(x.float(), *a, **k))(u_t, L2)
        y = (lambda x, *a, **k: torch.fft.irfft(x, *a, **k).to(torch.bfloat16))(Uf * Kf[None, :, :], L2)[:, :, :L]
        y = (lambda x, *d: x.permute(*d))(y, 0, 2, 1)
        return y + u * D_skip[None, None, :]

    x = A_x
    x = x + _A_ref(_layernorm(x, axis=-1), A_wqkv, A_wo)
    x = x + _B_ref(_layernorm(x, axis=-1), B_log_A_real, B_A_imag, B_C_real, B_C_imag, B_log_dt, B_D_skip)
    x = x + _A_ref(_layernorm(x, axis=-1), A_wqkv, A_wo)
    x = x + _B_ref(_layernorm(x, axis=-1), B_log_A_real, B_A_imag, B_C_real, B_C_imag, B_log_dt, B_D_skip)
    return x
```

```python
import re

TRANS = ("v_exp_f32", "v_log_f32", "v_rcp_f32", "v_rsq_f32", "v_sqrt_f32", "v_sin_f32", "v_cos_f32", "v_rcp_iflag_f32")

def _expand(tok):
    tok = tok.strip()
    neg = tok.lstrip("-")
    m = re.fullmatch(r"(?:abs\()?([vsa])(\d+)\)?", neg)
    if m: return [(m.group(1), int(m.group(2)))]
    m = re.fullmatch(r"([vsa])\[(\d+):(\d+)\]", neg)
    if m: return [(m.group(1), i) for i in range(int(m.group(2)), int(m.group(3)) + 1)]
    if neg == "vcc": return [("s", "vcc")]
    if neg == "exec": return [("s", "exec")]
    if neg == "m0": return [("s", "m0")]
    return []

class Ins:
    __slots__ = ("text", "op", "ops", "dst", "src", "cls", "passes", "srcC", "srcAB", "raw")
    def __init__(self, text):
        self.text = text
        t = text.split(";")[0].strip()
        parts = t.split(None, 1)
        self.op = parts[0] if parts else ""
        rest = parts[1] if len(parts) > 1 else ""
        ops = []; depth = 0; cur = ""
        for ch in rest:
            if ch == "[": depth += 1
            if ch == "]": depth -= 1
            if ch == "," and depth == 0: ops.append(cur.strip()); cur = ""
            else: cur += ch
        if cur.strip(): ops.append(cur.strip())
        clean = []
        for o in ops:
            clean.append(o.split()[0] if o.split() else o)
        self.ops = clean
        op = self.op
        self.dst = []; self.src = []; self.passes = 0; self.srcC = []; self.srcAB = []
        R = [_expand(o) for o in clean]
        if op.startswith("v_mfma"):
            self.cls = "mfma"
            self.dst = R[0]; self.srcAB = R[1] + R[2]; self.srcC = R[3] if len(R) > 3 else []
            self.src = self.srcAB + self.srcC
            self.passes = 8 if "32x32" in op else 4
        elif op.startswith("v_"):
            self.cls = "trans" if any(op.startswith(x) for x in TRANS) else "valu"
            if op.startswith("v_cmp"):
                self.dst = R[0]; self.src = sum(R[1:], [])
            elif op.startswith("v_permlane") and "swap" in op or op.startswith("v_swap"):
                self.dst = R[0] + R[1]; self.src = R[0] + R[1]
            elif op.startswith(("v_add_co", "v_sub_co", "v_addc_co", "v_subb_co", "v_subrev_co")):
                self.dst = R[0] + R[1]; self.src = sum(R[2:], [])
            else:
                self.dst = R[0]; self.src = sum(R[1:], [])
                if op.startswith(("v_fmac", "v_dot2c", "v_pk_fmac", "v_writelane")): self.src += R[0]
                if op.startswith("v_cndmask") and len(clean) == 3: self.src += [("s", "vcc")]
        elif op.startswith("ds_"):
            self.cls = "ds"
            if op.startswith(("ds_read", "ds_bpermute", "ds_permute", "ds_swizzle")):
                self.dst = R[0]; self.src = sum(R[1:], [])
            else:
                self.src = sum(R, [])
        elif op.startswith(("buffer_", "global_", "flat_")):
            self.cls = "vmem"
            isload = "_load_" in op
            lds = " lds" in (" " + t + " ").replace("\t", " ") and op.startswith("buffer_load") and re.search(r"\blds\b", t) is not None
            if op.startswith("global_load_lds"): lds = True
            if isload and not lds:
                self.dst = R[0]; self.src = sum(R[1:], [])
            else:
                self.src = sum(R, [])
            if lds: self.src += [("s", "m0")]
        elif op.startswith("s_"):
            self.cls = "salu"
            if op.startswith(("s_cmp", "s_cbranch", "s_branch", "s_waitcnt", "s_nop", "s_barrier", "s_endpgm", "s_setprio", "s_sleep")):
                self.src = sum(R, [])
            else:
                self.dst = R[0] if R else []; self.src = sum(R[1:], [])
                if "saveexec" in op: self.dst = self.dst + [("s", "exec")]
        else:
            self.cls = "other"
    def states(self):
        if self.op == "s_nop":
            return int(self.ops[0], 0) + 1
        return 1

def _vg(regs): return set(r for r in regs if r[0] in ("v", "a"))
def _sg(regs): return set(r for r in regs if r[0] == "s")

def need(p, c):
    n = 0
    pv = _vg(p.dst)
    valu_p = p.cls in ("valu", "trans")
    valu_c = c.cls in ("valu", "trans")
    if valu_p:
        if c.cls == "mfma" and pv & _vg(c.src): n = max(n, 2)
        if valu_c and pv & _vg(c.src):
            if c.op.startswith("v_permlane") or "dpp" in c.text or "row_" in c.text or "quad_perm" in c.text: n = max(n, 2)
            if c.op.startswith(("v_readlane", "v_readfirstlane")): n = max(n, 1)
            if p.cls == "trans" and c.cls != "trans": n = max(n, 1)
            if p.cls == "trans" and c.cls == "trans": n = max(n, 1)
        ps = _sg(p.dst)
        if ps:
            if valu_c and ps & _sg(c.src):
                n = max(n, 4 if c.op.startswith(("v_readlane", "v_writelane")) else 2)
            if c.cls == "vmem" and ps & _sg(c.src): n = max(n, 5)
            if c.cls == "salu" and ps & _sg(c.src): n = max(n, 1)
        if p.cls == "trans" and c.cls in ("ds", "vmem") and pv & _vg(c.src): n = max(n, 1)
    if p.cls == "mfma":
        tab_v = {4: 8, 8: 12}[p.passes]
        tab_c = {4: 6, 8: 10}[p.passes]
        war = {4: 3, 8: 7}[p.passes]
        if c.cls == "mfma":
            if pv & _vg(c.srcAB): n = max(n, tab_v)
            if pv & _vg(c.srcC):
                same = (p.dst == c.srcC and p.passes == c.passes)
                if not same: n = max(n, tab_c)
        else:
            if c.cls in ("valu", "trans", "ds", "vmem"):
                if pv & (_vg(c.src) | _vg(c.dst)): n = max(n, tab_v)
            if valu_c and _vg(p.srcC) & _vg(c.dst): n = max(n, war)
    if p.cls == "salu" and ("s", "m0") in p.dst:
        if c.cls == "vmem" and ("s", "m0") in c.src: n = max(n, 1)
    if p.cls == "vmem" and ("store" in p.op) and ("x3" in p.op or "x4" in p.op):
        data = _vg(_expand(p.ops[0]) if p.op.startswith("buffer") else _expand(p.ops[1]))
        if data & _vg(c.dst) and c.cls in ("valu", "trans", "mfma"): n = max(n, 2)
        elif data & _vg(c.dst): n = max(n, 1)
    if p.cls == "ds" and p.op.startswith("ds_write") and ("b128" in p.op or "b96" in p.op):
        pass
    if p.cls == "salu" and ("s", "exec") in p.dst and valu_c and (c.op.startswith("v_permlane") or "row_" in c.text or "quad_perm" in c.text):
        n = max(n, 1)
    return n

class Asm:
    def __init__(self):
        self.items = []
    def raw(self, s): self.items.append(s)
    def label(self, l): self.items.append(l + ":")
    def __call__(self, s):
        for line in s.split("\n"):
            line = line.strip()
            if not line: continue
            if line.startswith(";"): self.items.append("    " + line); continue
            if line.endswith(":") or line.startswith("."): self.items.append(line); continue
            self.items.append(Ins(line))
    def resolve(self, window=24):
        out = []; hist = []
        nnop = 0
        for it in self.items:
            if isinstance(it, str):
                out.append(it); continue
            req = 0; dist = 0
            for p in reversed(hist[-window:]):
                n = need(p, it)
                if n > dist: req = max(req, n - dist)
                dist += p.states()
                if dist >= 20: break
            while req > 0:
                k = min(req, 16)
                nop = Ins(f"s_nop {k-1}")
                out.append(nop); hist.append(nop); req -= k; nnop += 1
            out.append(it); hist.append(it)
            if it.op in ("s_branch", "s_endpgm", "s_setpc_b64"):
                hist = []
        self.nnop = nnop
        return out
    def fence(self, n=12):
        while n > 0:
            k = min(n, 16); self(f"s_nop {k-1}"); n -= k
    def text(self):
        return "\n".join((it if isinstance(it, str) else "    " + it.text) for it in self.resolve()) + "\n"

def kernel_header(name):
    return f""".globl {name}
.p2align 8
.type {name},@function
{name}:
"""
def kernel_desc(name, vgpr, sgpr, accum=None, wgid_y=False):
    accum = accum if accum is not None else (vgpr + 3) // 4 * 4
    return f""".amdhsa_kernel {name}
  .amdhsa_next_free_vgpr {vgpr}
  .amdhsa_next_free_sgpr {sgpr}
  .amdhsa_accum_offset {accum}
  .amdhsa_group_segment_fixed_size 0
  .amdhsa_kernarg_size 104
  .amdhsa_user_sgpr_count 2
  .amdhsa_user_sgpr_kernarg_segment_ptr 1
  .amdhsa_system_sgpr_workgroup_id_x 1
.end_amdhsa_kernel
"""
def vr(a, n=1):
    return f"v{a}" if n == 1 else f"v[{a}:{a+n-1}]"
def sr(a, n=1):
    return f"s{a}" if n == 1 else f"s[{a}:{a+n-1}]"


class Stamps:
    def __init__(self, on): self.on = on; self.n = 0
    def stamp(self, a):
        if not self.on: return
        i = self.n; self.n += 1
        a(f"s_memtime s[{70+2*i}:{71+2*i}]")
    def stamp_at(self, a, i):
        if not self.on: return
        self.n = max(self.n, i + 1)
        a(f"s_memtime s[{70+2*i}:{71+2*i}]")
    def real_at(self, a, i):
        if not self.on: return
        self.n = max(self.n, i + 1)
        a(f"s_memrealtime s[{70+2*i}:{71+2*i}]")
    def dump(self, a, ws_lo, ws_hi, wave_sreg, off=0x8000000, n=None):
        if not self.on: return
        n = n or self.n
        a("s_waitcnt lgkmcnt(0)")
        a(f"s_add_u32 s64, s{ws_lo}, {off}")
        a(f"s_addc_u32 s65, s{ws_hi}, 0")
        a("s_mov_b32 s66, 0x1000000"); a("s_mov_b32 s67, 0x20000")
        a(f"s_lshl_b32 s68, s2, 3"); a(f"s_add_u32 s68, s68, s{wave_sreg}"); a("s_lshl_b32 s68, s68, 6")
        a("s_mov_b64 exec, 1")
        a("v_mov_b32 v1, 0")
        for i in range(n):
            a(f"v_mov_b32 v2, s{70+2*i}")
            a(f"buffer_store_dword v2, v1, s[64:67], s68 offen offset:{4*i}")
        a("s_mov_b64 exec, -1")
```

```python
from asmlib import *
from layout import *

XS = 10240
WS_ = 24576
WBASE = 4 * XS
EX = WBASE + 4 * WS_
STAT = EX; CS = EX + 640; KV = EX + 1536; SCR = EX + 5632
A1_LDS = EX + 8704

V_TID, V_LANE, V_J, V_G = 0, 1, 2, 3
V_XOFF0, V_XOFF1, V_WOFF = 4, 5, 6
V_XA0, V_XA1 = 7, 8
V_WA0, V_WA1 = 9, 10
V_T = 11
ONES = 20
ACC = dict(Qa=24, Qb=28, Ka=32, Kb=36, Va=40, Vb=44, ST=48, Qh=52, Kh=56, Vh=60, HS=52)
FR = [64, 100]
def frag(setb, name):
    return FR[setb] + 4 * ["wq", "wk", "wv", "xa", "xb", "xh"].index(name)
NV = 168

def emit_dma(a, c, rp, h, n5):
    slot = c & 3
    if n5:
        for v in range(2):
            a(f"s_add_u32 m0, s40, {slot*XS + v*1024}")
            a(f"s_mov_b32 s44, {c*128}")
            if rp == 0 and h == 0 and v == 0:
                a("s_mov_b64 exec, s[46:47]")
                a(f"buffer_load_dwordx4 v{V_XOFF0}, s[12:15], s44 offen lds")
                a("s_mov_b64 exec, -1")
            else:
                a(f"buffer_load_dwordx4 v{V_XOFF0+v}, s[12:15], s44 offen lds")
    for q in range(3):
        a(f"s_add_u32 m0, s41, {slot*WS_ + q*8192}")
        a(f"s_add_u32 s44, s42, {c*64*3072 + q*1024}")
        a(f"buffer_load_dwordx4 v{V_WOFF}, s[16:19], s44 offen lds")

def emit_reads(a, c, ks, setb, rp, need_xh):
    slot = c & 3
    wa = V_WA0 if slot < 2 else V_WA1
    wimm = (slot & 1) * WS_ + ks * 4096
    for q, nm in enumerate(["wq", "wk", "wv"]):
        r = frag(setb, nm)
        a(f"ds_read_b64_tr_b16 v[{r}:{r+1}], v{wa} offset:{wimm + q*8192}")
        a(f"ds_read_b64_tr_b16 v[{r+2}:{r+3}], v{wa} offset:{wimm + q*8192 + 512}")
    xa = V_XA0 + ks
    ta, tb = 1 + 2*rp, 2 + 2*rp
    for nm, t in (("xa", ta), ("xb", tb)) + ((("xh", 0),) if need_xh else ()):
        r = frag(setb, nm)
        a(f"ds_read_b128 v[{r}:{r+3}], v{xa} offset:{slot*XS + t*2048}")
    return 8 + (1 if need_xh else 0)

def mf(a, d, x, y):
    a(f"v_mfma_f32_16x16x32_bf16 v[{d}:{d+3}], v[{x}:{x+3}], v[{y}:{y+3}], v[{d}:{d+3}]")

def emit_mfmas(a, setb, rp, h):
    f = lambda n: frag(setb, n)
    A = ACC
    mf(a, A["Qa"], f("wq"), f("xa")); mf(a, A["Ka"], f("wk"), f("xa")); mf(a, A["Va"], f("xa"), f("wv"))
    mf(a, A["Qb"], f("wq"), f("xb")); mf(a, A["Kb"], f("wk"), f("xb")); mf(a, A["Vb"], f("xb"), f("wv"))
    st = f("xb") if (h & 1) else f("xa")
    if h >> 1: mf(a, A["ST"], st, st)
    else:      mf(a, A["ST"], ONES, st)
    if rp == 0:
        mf(a, A["Qh"], f("wq"), f("xh")); mf(a, A["Kh"], f("wk"), f("xh")); mf(a, A["Vh"], f("xh"), f("wv"))
    elif h == 0: mf(a, A["HS"], ONES, f("xh"))
    elif h == 1: mf(a, A["HS"], f("xh"), f("xh"))

def emit_mainloop(a, rp, h):
    w = rp * 4 + h
    n5 = w < 5
    n = 5 if n5 else 3
    need_xh = (rp == 0) or (h < 2)
    ST.stamp_at(a, 1)
    for c in range(4): emit_dma(a, c, rp, h, n5)
    ST.stamp_at(a, 2)
    a(f"s_waitcnt vmcnt({3*n}) lgkmcnt(0)")
    a("s_barrier")
    ST.stamp_at(a, 3)
    nr = emit_reads(a, 0, 0, 0, rp, need_xh)
    allowed = {0: 2, 1: 1, 2: 1, 3: 1, 4: 1, 5: 1, 6: 0}
    for c in range(8):
        emit_reads(a, c, 1, 1, rp, need_xh)
        a(f"s_waitcnt lgkmcnt({nr})")
        emit_mfmas(a, 0, rp, h)
        if c < 7:
            a(f"s_waitcnt vmcnt({allowed[c]*n})")
            a("s_barrier")
            if c in (0, 3): ST.stamp_at(a, 4 if c == 0 else 5)
            if c >= 1 and c + 3 <= 7: emit_dma(a, c + 3, rp, h, n5)
            emit_reads(a, c + 1, 0, 0, rp, need_xh)
            a(f"s_waitcnt lgkmcnt({nr})")
        else:
            a("s_waitcnt lgkmcnt(0)")
        emit_mfmas(a, 1, rp, h)

def rnd(a, x, t):
    a(f"v_cvt_pk_bf16_f32 v{t}, v{x}, v{x}")
    a(f"v_lshlrev_b32 v{x}, 16, v{t}")

def emit_stat_writes(a, rp, h):
    A = ACC
    ts = 1 + 2*rp + (h & 1)
    def put(acc, tile, typ):
        a(f"v_lshlrev_b32 v11, 2, v{V_J}")
        a(f"v_add_u32 v11, {STAT + tile*128 + typ*64}, v11")
        if typ == 0:
            a("s_mov_b64 exec, 0xffff")
            a(f"ds_write_b32 v11, v{acc}")
            a("s_mov_b64 exec, -1")
        else:
            a(f"v_cndmask_b32 v12, v{acc}, v{acc+1}, s[48:49]")
            a(f"v_cndmask_b32 v13, v{acc+2}, v{acc+3}, s[48:49]")
            a(f"v_cndmask_b32 v12, v12, v13, s[50:51]")
            a("s_mov_b64 exec, s[52:53]")
            a("ds_write_b32 v11, v12")
            a("s_mov_b64 exec, -1")
    put(A["ST"], ts, h >> 1)
    if rp == 1 and h < 2: put(A["HS"], 0, h)
    if rp == 0:
        a(f"v_lshlrev_b32 v11, 4, v{V_G}")
        a(f"v_add_u32 v11, {CS + h*192}, v11")
        a("s_mov_b64 exec, s[54:55]")
        a(f"ds_write_b128 v11, v[{A['Qh']}:{A['Qh']+3}]")
        a(f"ds_write_b128 v11, v[{A['Kh']}:{A['Kh']+3}] offset:64")
        a("s_mov_b64 exec, 0xffff")
        a(f"v_lshlrev_b32 v12, 2, v{V_J}")
        a(f"v_add_u32 v12, {CS + h*192 + 128}, v12")
        a(f"ds_write_b32 v12, v{A['Vh']}")
        a("s_mov_b64 exec, -1")

def emit_epilogue(a, rp):
    A = ACC
    tiles = [("a", 1 + 2*rp), ("b", 2 + 2*rp)] + ([("h", 0)] if rp == 0 else [])
    base = 64
    NM = {}; RS = {}; NM4 = {}; RS4 = {}
    for i, (t, _) in enumerate(tiles):
        NM[t] = base + 12*i; RS[t] = base + 12*i + 1
        NM4[t] = base + 12*i + 4; RS4[t] = base + 12*i + 8
    CQ, CK, CV = 100, 104, 108
    a(f"v_lshlrev_b32 v11, 2, v{V_J}")
    a(f"v_add_u32 v11, {STAT}, v11")
    for (t, ti) in tiles:
        a(f"ds_read_b32 v{NM[t]}, v11 offset:{ti*128}")
        a(f"ds_read_b32 v{RS[t]}, v11 offset:{ti*128+64}")
    a(f"s_mul_i32 s44, s30, 192")
    a(f"v_lshlrev_b32 v12, 4, v{V_G}")
    a("v_add_u32 v12, s44, v12")
    a(f"v_add_u32 v12, {CS}, v12")
    a(f"ds_read_b128 v[{CQ}:{CQ+3}], v12")
    a(f"ds_read_b128 v[{CK}:{CK+3}], v12 offset:64")
    a(f"v_lshlrev_b32 v13, 2, v{V_J}")
    a("v_add_u32 v13, s44, v13")
    a(f"v_add_u32 v13, {CS + 128}, v13")
    a(f"ds_read_b32 v{CV}, v13")
    a("s_mul_i32 s45, s28, 384")
    a(f"s_add_u32 s45, s45, {SCR}")
    a(f"v_lshlrev_b32 v14, 2, v{V_J}")
    a("v_add_u32 v14, s45, v14")
    a(f"v_lshlrev_b32 v15, 4, v{V_G}")
    a("v_add_u32 v15, s45, v15")
    a("s_mov_b32 s44, 0x3b000000")
    a("s_mov_b32 s45, 0x3727c5ac")
    a("s_waitcnt lgkmcnt(0)")
    for i, (t, ti) in enumerate(tiles):
        m, s = NM[t], RS[t]
        a(f"v_mul_f32 v{m}, s44, v{m}")
        a(f"v_mul_f32 v{s}, s44, v{s}")
        a(f"v_fma_f32 v{s}, -v{m}, v{m}, v{s}")
        a(f"v_max_f32 v{s}, 0, v{s}")
        a(f"v_cvt_pk_bf16_f32 v16, v{m}, v{s}")
        a(f"v_lshlrev_b32 v{m}, 16, v16")
        a(f"v_and_b32 v{s}, 0xffff0000, v16")
        a(f"v_add_f32 v{s}, s45, v{s}")
        rnd(a, s, 16)
        a(f"v_sqrt_f32 v{s}, v{s}")
        rnd(a, s, 16)
        a(f"v_rcp_f32 v{s}, v{s}")
        a(f"v_sub_f32 v{m}, 0, v{m}")
        a("s_mov_b64 exec, 0xffff")
        a(f"ds_write_b32 v14, v{m} offset:{i*128}")
        a(f"ds_write_b32 v14, v{s} offset:{i*128+64}")
        a("s_mov_b64 exec, -1")
    a("s_waitcnt lgkmcnt(0)")
    for i, (t, ti) in enumerate(tiles):
        a(f"ds_read_b128 v[{NM4[t]}:{NM4[t]+3}], v15 offset:{i*128}")
        a(f"ds_read_b128 v[{RS4[t]}:{RS4[t]+3}], v15 offset:{i*128+64}")
    QP = {"a": 112, "b": 114}; KP = {"a": 116, "b": 118, "h": 120}; VP = {"a": 122, "b": 124, "h": 126}
    def corr_rowlane(acc, cs, t, dst, scale):
        nm, rs = NM[t], RS[t]
        for p in range(2):
            a(f"v_pk_fma_f32 v[{acc+2*p}:{acc+2*p+1}], v[{nm}:{nm+1}], v[{cs+2*p}:{cs+2*p+1}], v[{acc+2*p}:{acc+2*p+1}] op_sel:[0,0,0] op_sel_hi:[0,1,1]")
        if scale:
            for p in range(2):
                a(f"v_pk_mul_f32 v[{acc+2*p}:{acc+2*p+1}], v[{nm}:{nm+1}], v[{acc+2*p}:{acc+2*p+1}] op_sel:[1,0] op_sel_hi:[1,1]")
        for p in range(2):
            a(f"v_cvt_pk_bf16_f32 v{dst+p}, v{acc+2*p}, v{acc+2*p+1}")
    for t in ("a", "b"):
        corr_rowlane(A["Q"+t], CQ, t, QP[t], False)
    for (t, _) in tiles:
        corr_rowlane(A["K"+t], CK, t, KP[t], True)
    a("s_waitcnt lgkmcnt(0)")
    for (t, _) in tiles:
        acc = A["V"+t]
        for p in range(2):
            a(f"v_pk_fma_f32 v[{acc+2*p}:{acc+2*p+1}], v[{NM4[t]+2*p}:{NM4[t]+2*p+1}], v[{CV}:{CV+1}], v[{acc+2*p}:{acc+2*p+1}] op_sel:[0,0,0] op_sel_hi:[1,0,1]")
        for p in range(2):
            a(f"v_pk_mul_f32 v[{acc+2*p}:{acc+2*p+1}], v[{RS4[t]+2*p}:{RS4[t]+2*p+1}], v[{acc+2*p}:{acc+2*p+1}]")
        for p in range(2):
            a(f"v_cvt_pk_bf16_f32 v{VP[t]+p}, v{acc+2*p}, v{acc+2*p+1}")
    a(f"s_lshl_b32 s44, s30, 10")
    a(f"v_lshlrev_b32 v11, 3, v{V_LANE}")
    a("v_add_u32 v11, s44, v11")
    a(f"v_add_u32 v11, {KV}, v11")
    if rp == 0:
        a(f"ds_write_b64 v11, v[{KP['b']}:{KP['b']+1}]")
        a(f"ds_write_b64 v11, v[{VP['b']}:{VP['b']+1}] offset:512")
        a("s_waitcnt lgkmcnt(0)")
        a("s_barrier")
    else:
        a("s_barrier")
        KP["h"] = 120; VP["h"] = 126
        a(f"ds_read_b64 v[{KP['h']}:{KP['h']+1}], v11")
        a(f"ds_read_b64 v[{VP['h']}:{VP['h']+1}], v11 offset:512")
    a(f"v_and_b32 v12, 1, v{V_J}")
    a(f"v_lshlrev_b32 v13, 2, v{V_G}")
    a("v_add_u32 v13, v13, v12")
    a(f"v_cmp_le_u32 s[56:57], v13, v{V_J}")
    a("v_add_u32 v13, 2, v13")
    a(f"v_cmp_le_u32 s[58:59], v13, v{V_J}")
    a("v_mov_b32 v14, 0xffff")
    a("v_mov_b32 v15, 0xffff0000")
    a("v_cndmask_b32 v14, v14, v15, s[48:49]")
    a("v_mov_b32 v15, 0")
    a("v_cndmask_b32 v128, v15, v14, s[56:57]")
    a("v_cndmask_b32 v129, v14, v15, s[56:57]")
    a("v_cndmask_b32 v130, v15, v14, s[58:59]")
    a("v_cndmask_b32 v131, v14, v15, s[58:59]")
    a("s_mov_b32 s44, 0x3eb8aa3b")
    if rp == 1: a("s_waitcnt lgkmcnt(0)")
    a(f"v_lshlrev_b32 v16, 10, v{V_J}")
    a(f"v_lshlrev_b32 v17, 3, v{V_G}")
    a("v_add_u32 v16, v16, v17")
    a("s_lshl_b32 s45, s32, 2")
    a("s_add_u32 s45, s45, s30")
    a("s_lshl_b32 s45, s45, 5")
    a("s_lshl_b32 s43, s31, 16")
    a("s_add_u32 s45, s45, s43")
    for (t, prev, ti) in (("a", "h", 1 + 2*rp), ("b", "a", 2 + 2*rp)):
        SC, SP = 132, 136
        q, kc, kp, vc, vp = QP[t], KP[t], KP[prev], VP[t], VP[prev]
        a(f"v_mfma_f32_16x16x16_bf16 v[{SC}:{SC+3}], v[{kc}:{kc+1}], v[{q}:{q+1}], 0")
        a(f"v_mfma_f32_16x16x16_bf16 v[{SP}:{SP+3}], v[{kp}:{kp+1}], v[{q}:{q+1}], 0")
        a(f"v_mul_f32 v140, s44, v{RS[t]}")
        if rp == 0 and t == "a":
            lab = f"A1_NOTFIRST_{rp}"
            a.fence(8)
            a("s_cmp_lg_u32 s31, 0")
            a(f"s_cbranch_scc1 {lab}")
            for r in range(4): a(f"v_mov_b32 v{SP+r}, 0xf149f2ca")
            a.label(lab)
        a(f"v_cndmask_b32 v141, v{SC}, v{SC+1}, s[48:49]")
        a(f"v_cndmask_b32 v142, v{SP}, v{SP+1}, s[48:49]")
        a(f"v_cndmask_b32 v141, v142, v141, s[56:57]")
        a(f"v_cndmask_b32 v143, v{SC+2}, v{SC+3}, s[48:49]")
        a(f"v_cndmask_b32 v142, v{SP+2}, v{SP+3}, s[48:49]")
        a(f"v_cndmask_b32 v142, v142, v143, s[58:59]")
        a("v_mul_f32 v141, v141, v140")
        a("v_mul_f32 v142, v142, v140")
        a("v_max_f32 v143, v141, v142")
        a("v_mov_b32 v144, v143")
        a("v_permlane16_swap_b32 v143, v144")
        a("v_max_f32 v143, v143, v144")
        a("v_mov_b32 v144, v143")
        a("v_permlane32_swap_b32 v143, v144")
        a("v_max_f32 v143, v143, v144")
        a("v_sub_f32 v141, v141, v143")
        a("v_sub_f32 v142, v142, v143")
        a("v_exp_f32 v141, v141")
        a("v_exp_f32 v142, v142")
        a("v_cvt_pk_bf16_f32 v141, v141, v141")
        a("v_cvt_pk_bf16_f32 v142, v142, v142")
        a("v_and_b32 v146, v141, v128")
        a("v_and_b32 v147, v142, v130")
        a("v_and_b32 v148, v141, v129")
        a("v_and_b32 v149, v142, v131")
        O, L = 152, 156
        a(f"v_mfma_f32_16x16x16_bf16 v[{O}:{O+3}], v[{vc}:{vc+1}], v[146:147], 0")
        a(f"v_mfma_f32_16x16x16_bf16 v[{L}:{L+3}], v[{ONES}:{ONES+1}], v[146:147], 0")
        a(f"v_mfma_f32_16x16x16_bf16 v[{O}:{O+3}], v[{vp}:{vp+1}], v[148:149], v[{O}:{O+3}]")
        a(f"v_mfma_f32_16x16x16_bf16 v[{L}:{L+3}], v[{ONES}:{ONES+1}], v[148:149], v[{L}:{L+3}]")
        a(f"v_rcp_f32 v160, v{L}")
        a(f"v_pk_mul_f32 v[{O}:{O+1}], v[160:161], v[{O}:{O+1}] op_sel:[0,0] op_sel_hi:[0,1]")
        a(f"v_pk_mul_f32 v[{O+2}:{O+3}], v[160:161], v[{O+2}:{O+3}] op_sel:[0,0] op_sel_hi:[0,1]")
        a(f"v_cvt_pk_bf16_f32 v162, v{O}, v{O+1}")
        a(f"v_cvt_pk_bf16_f32 v163, v{O+2}, v{O+3}")
        a(f"s_add_u32 s43, s45, {16*(ti-1)*1024}")
        a(f"buffer_store_dwordx2 v[162:163], v16, s[20:23], s43 offen")

def gen_a1(name, layer, stamps=False):
    a = Asm()
    global ST; ST = Stamps(stamps)
    P = name.upper()
    a.raw(kernel_header(name))
    a("s_cmp_ge_u32 s2, 256")
    a(f"s_cbranch_scc1 {P}_END")
    ST.stamp_at(a, 0)
    ST.real_at(a, 10)
    if layer == 0:
        a(f"s_load_dwordx4 s[4:7], s[0:1], {KA_X}")
    else:
        a(f"s_load_dwordx2 s[6:7], s[0:1], {KA_WQKV}")
    a(f"s_load_dwordx2 s[8:9], s[0:1], {KA_WS}")
    a(f"v_and_b32 v{V_LANE}, 63, v0")
    a("v_lshrrev_b32 v11, 6, v0")
    a(f"v_and_b32 v{V_J}, 15, v{V_LANE}")
    a("v_readfirstlane_b32 s28, v11")
    a(f"v_lshrrev_b32 v{V_G}, 4, v{V_LANE}")
    a("s_lshr_b32 s29, s28, 2")
    a("s_and_b32 s30, s28, 3")
    a("s_and_b32 s33, s2, 7")
    a("s_lshr_b32 s34, s2, 3")
    a("s_lshr_b32 s31, s33, 1")
    a("s_lshl_b32 s31, s31, 3")
    a("s_and_b32 s35, s34, 7")
    a("s_add_u32 s31, s31, s35")
    a("s_and_b32 s32, s33, 1")
    a("s_lshl_b32 s32, s32, 2")
    a("s_lshr_b32 s35, s34, 3")
    a("s_add_u32 s32, s32, s35")
    a(f"v_lshrrev_b32 v11, 3, v{V_LANE}")
    a("s_lshl_b32 s35, s31, 6")
    a("s_lshl_b32 s36, s28, 4")
    a("s_add_u32 s35, s35, s36")
    a("s_sub_u32 s35, s35, 16")
    a("v_add_u32 v11, s35, v11")
    a("v_lshlrev_b32 v11, 10, v11")
    a(f"v_lshrrev_b32 v12, 4, v{V_LANE}")
    a(f"v_and_b32 v13, 7, v{V_LANE}")
    a("v_xor_b32 v14, v13, v12")
    a("v_lshlrev_b32 v14, 4, v14")
    a(f"v_add_u32 v{V_XOFF0}, v11, v14")
    a("v_xor_b32 v14, 64, v14")
    a("v_add_u32 v11, 8192, v11")
    a(f"v_add_u32 v{V_XOFF1}, v11, v14")
    a(f"v_lshrrev_b32 v11, 3, v{V_LANE}")
    a("v_mul_u32_u24 v11, 3072, v11")
    a(f"v_lshrrev_b32 v12, 4, v{V_LANE}")
    a("v_and_b32 v12, 1, v12")
    a("s_and_b32 s35, s28, 1")
    a("s_lshl_b32 s35, s35, 1")
    a("v_or_b32 v12, s35, v12")
    a(f"v_lshrrev_b32 v13, 1, v{V_LANE}")
    a("v_and_b32 v13, 3, v13")
    a("v_xor_b32 v13, v13, v12")
    a("v_lshlrev_b32 v13, 5, v13")
    a("v_add_u32 v11, v11, v13")
    a(f"v_and_b32 v13, 1, v{V_LANE}")
    a("v_lshlrev_b32 v13, 4, v13")
    a("v_add_u32 v11, v11, v13")
    a("s_lshl_b32 s35, s32, 7")
    a(f"v_add_u32 v{V_WOFF}, s35, v11")
    a(f"v_lshrrev_b32 v11, 1, v{V_J}")
    a(f"v_xor_b32 v11, v11, v{V_G}")
    a("v_lshlrev_b32 v11, 4, v11")
    a(f"v_lshlrev_b32 v12, 7, v{V_J}")
    a(f"v_add_u32 v{V_XA0}, v11, v12")
    a(f"v_xor_b32 v{V_XA1}, 64, v{V_XA0}")
    a(f"v_lshrrev_b32 v11, 2, v{V_J}")
    a(f"v_lshlrev_b32 v12, 3, v{V_G}")
    a("v_add_u32 v12, v12, v11")
    a("v_lshlrev_b32 v12, 7, v12")
    a("v_lshrrev_b32 v11, 1, v11")
    a(f"v_and_b32 v13, 1, v{V_G}")
    a("v_lshlrev_b32 v13, 1, v13")
    a("v_or_b32 v11, v11, v13")
    a("v_xor_b32 v11, s30, v11")
    a("v_lshlrev_b32 v11, 5, v11")
    a("v_add_u32 v12, v12, v11")
    a(f"v_and_b32 v11, 3, v{V_LANE}")
    a("v_lshlrev_b32 v11, 3, v11")
    a("v_add_u32 v12, v12, v11")
    a(f"v_add_u32 v{V_WA0}, {WBASE}, v12")
    a(f"v_add_u32 v{V_WA1}, {WBASE + 2*WS_}, v12")
    a("s_lshl_b32 s40, s28, 11")
    a("s_lshl_b32 s41, s28, 10")
    a(f"s_add_u32 s41, s41, {WBASE}")
    a(f"s_mul_i32 s42, s28, {8*3072}")
    a("s_mov_b32 s46, 0xffffff00")
    a("s_mov_b32 s47, -1")
    a(f"v_and_b32 v11, 1, v{V_J}")
    a("v_cmp_eq_u32 s[48:49], 1, v11")
    a(f"v_and_b32 v11, 2, v{V_J}")
    a("v_cmp_eq_u32 s[50:51], 2, v11")
    a(f"v_lshrrev_b32 v11, 2, v{V_J}")
    a(f"v_cmp_eq_u32 s[52:53], v11, v{V_G}")
    a(f"v_cmp_eq_u32 s[54:55], 0, v{V_J}")
    for i in range(4): a(f"v_mov_b32 v{ONES+i}, 0x3f803f80")
    for i in range(24, 64): a(f"v_mov_b32 v{i}, 0")
    a("s_cmp_lg_u32 s28, 0")
    a(f"s_cbranch_scc1 {P}_NOONES")
    a(f"v_lshlrev_b32 v11, 4, v{V_LANE}")
    a("s_mov_b64 exec, 0xff")
    for s in range(4): a(f"ds_write_b128 v11, v[{ONES}:{ONES+3}] offset:{s*XS}")
    a("s_mov_b64 exec, -1")
    a.label(f"{P}_NOONES")
    a("s_waitcnt lgkmcnt(0)")
    if layer == 0:
        a("s_mov_b32 s12, s4"); a("s_mov_b32 s13, s5")
    else:
        a(f"s_add_u32 s12, s8, {WS_X2}"); a("s_addc_u32 s13, s9, 0")
    a("s_mov_b32 s14, 0x200000"); a("s_mov_b32 s15, 0x20000")
    a("s_mov_b32 s16, s6"); a("s_mov_b32 s17, s7"); a("s_mov_b32 s18, 0x180000"); a("s_mov_b32 s19, 0x20000")
    a(f"s_add_u32 s20, s8, {WS_O}"); a("s_addc_u32 s21, s9, 0"); a("s_mov_b32 s22, 0x200000"); a("s_mov_b32 s23, 0x20000")
    a("s_cmp_lg_u32 s28, 7")
    a(f"s_cbranch_scc1 {P}_NOZ")
    a(f"s_add_u32 s24, s8, {WS_STATS0 if layer == 0 else WS_STATS1}"); a("s_addc_u32 s25, s9, 0")
    a("s_mov_b32 s26, 0x4000"); a("s_mov_b32 s27, 0x20000")
    a(f"v_lshlrev_b32 v11, 2, v{V_LANE}")
    a("s_lshl_b32 s35, s2, 6")
    a("v_mov_b32 v12, 0")
    a("s_mov_b64 exec, 0xffff")
    a("buffer_store_dword v12, v11, s[24:27], s35 offen")
    a("s_mov_b64 exec, -1")
    a("s_waitcnt vmcnt(0)")
    a.label(f"{P}_NOZ")
    for w in range(1, 8):
        a(f"s_cmp_eq_u32 s28, {w}")
        a(f"s_cbranch_scc1 {P}_V{w}")
    for w in range(8):
        rp, h = w >> 2, w & 3
        a.label(f"{P}_V{w}")
        emit_mainloop(a, rp, h)
        ST.stamp_at(a, 6)
        a.fence(8)
        emit_stat_writes(a, rp, h)
        a("s_waitcnt lgkmcnt(0)")
        a("s_barrier")
        a(f"s_branch {P}_EP{rp}")
    for rp in range(2):
        a.label(f"{P}_EP{rp}")
        ST.stamp_at(a, 7)
        emit_epilogue_named(a, rp, P)
        ST.stamp_at(a, 8)
        a("s_waitcnt vmcnt(0)")
        ST.stamp_at(a, 9)
        ST.real_at(a, 11)
        ST.dump(a, 8, 9, 28)
        a(f"s_branch {P}_END")
    a.label(f"{P}_END")
    a("s_endpgm")
    return a.text(), kernel_desc(name, NV, 100 if stamps else 64), A1_LDS

def emit_epilogue_named(a, rp, P):
    n0 = len(a.items)
    emit_epilogue(a, rp)
    for i in range(n0, len(a.items)):
        it = a.items[i]
        if isinstance(it, str):
            a.items[i] = it.replace("A1_NOTFIRST", P + "_NOTFIRST")
        elif "A1_NOTFIRST" in it.text:
            a.items[i] = Ins(it.text.replace("A1_NOTFIRST", P + "_NOTFIRST"))
```

```python
from asmlib import *
from layout import *
A2_LDS = 131072
WOB = 65536

def gen_a2(name, layer, stamps=False):
    a = Asm(); P = name.upper(); ST = Stamps(stamps)
    a.raw(kernel_header(name))
    a("s_cmp_ge_u32 s2, 256")
    a(f"s_cbranch_scc1 {P}_END")
    ST.stamp_at(a, 0); ST.real_at(a, 10)
    a(f"s_load_dwordx2 s[6:7], s[0:1], {KA_WO}")
    a(f"s_load_dwordx2 s[8:9], s[0:1], {KA_WS}")
    if layer == 0: a(f"s_load_dwordx2 s[4:5], s[0:1], {KA_X}")
    a("v_and_b32 v1, 63, v0")
    a("v_lshrrev_b32 v11, 6, v0")
    a("v_and_b32 v2, 15, v1")
    a("v_readfirstlane_b32 s28, v11")
    a("v_lshrrev_b32 v3, 4, v1")
    a("s_and_b32 s33, s2, 7")
    a("s_lshr_b32 s34, s2, 3")
    a("s_lshl_b32 s31, s33, 2")
    a("s_and_b32 s35, s34, 3")
    a("s_add_u32 s31, s31, s35")
    a("s_lshr_b32 s32, s34, 2")
    a("s_and_b32 s29, s28, 3")
    a("s_lshr_b32 s30, s28, 2")
    a("s_lshl_b32 s35, s28, 3")
    a("v_add_u32 v11, s35, v3")
    a("v_and_b32 v12, 15, v11")
    a("v_xor_b32 v12, v12, v2")
    a("v_lshlrev_b32 v12, 4, v12")
    a("s_lshl_b32 s36, s31, 6")
    a("v_add_u32 v13, s36, v11")
    a("v_lshlrev_b32 v13, 10, v13")
    a("v_add_u32 v4, v13, v12")
    a("v_add_u32 v11, 4, v11")
    a("v_and_b32 v12, 15, v11")
    a("v_xor_b32 v12, v12, v2")
    a("v_lshlrev_b32 v12, 4, v12")
    a("v_add_u32 v13, 4096, v13")
    a("v_add_u32 v5, v13, v12")
    a("v_lshrrev_b32 v11, 3, v1")
    a("v_lshlrev_b32 v11, 10, v11")
    a("v_and_b32 v12, 1, v3")
    a("v_lshrrev_b32 v13, 1, v1")
    a("v_and_b32 v13, 3, v13")
    a("v_xor_b32 v13, v13, v12")
    a("v_lshlrev_b32 v13, 5, v13")
    a("v_and_b32 v14, 1, v1")
    a("v_lshlrev_b32 v14, 4, v14")
    a("v_add_u32 v11, v11, v14")
    a("s_lshl_b32 s35, s32, 7")
    a("v_add_u32 v11, s35, v11")
    a("v_add_u32 v6, v11, v13")
    a("v_xor_b32 v13, 64, v13")
    a("v_add_u32 v11, 8192, v11")
    a("v_add_u32 v7, v11, v13")
    a("s_lshl_b32 s40, s28, 11")
    a("s_lshl_b32 s41, s28, 11")
    a(f"s_add_u32 s41, s41, {WOB}")
    a("s_lshl_b32 s42, s28, 14")
    a("s_waitcnt lgkmcnt(0)")
    a(f"s_add_u32 s12, s8, {WS_O}"); a("s_addc_u32 s13, s9, 0"); a("s_mov_b32 s14, 0x200000"); a("s_mov_b32 s15, 0x20000")
    a("s_mov_b32 s16, s6"); a("s_mov_b32 s17, s7"); a("s_mov_b32 s18, 0x80000"); a("s_mov_b32 s19, 0x20000")
    ST.stamp_at(a, 1)
    for c in range(4):
        for v in range(2):
            a(f"s_add_u32 m0, s40, {c*16384 + v*1024}")
            a(f"s_mov_b32 s44, {c*256}")
            a(f"buffer_load_dwordx4 v{4+v}, s[12:15], s44 offen lds")
        for v in range(2):
            a(f"s_add_u32 m0, s41, {c*128*128 + v*1024}")
            a(f"s_add_u32 s44, s42, {c*128*1024}")
            a(f"buffer_load_dwordx4 v{6+v}, s[16:19], s44 offen lds")
        if c < 3: a("s_barrier")
    if layer == 0:
        a("s_mov_b32 s20, s4"); a("s_mov_b32 s21, s5")
    else:
        a(f"s_add_u32 s20, s8, {WS_X2}"); a("s_addc_u32 s21, s9, 0")
    a("s_mov_b32 s22, 0x200000"); a("s_mov_b32 s23, 0x20000")
    a("s_lshl_b32 s35, s29, 4")
    a("s_add_u32 s35, s35, s36")
    a("v_lshlrev_b32 v11, 2, v3")
    a("v_add_u32 v11, s35, v11")
    a("v_lshlrev_b32 v12, 10, v11")
    a("s_lshl_b32 s37, s32, 6")
    a("s_lshl_b32 s38, s30, 5")
    a("s_add_u32 s37, s37, s38")
    a("v_add_u32 v13, s37, v2")
    a("v_lshlrev_b32 v14, 1, v13")
    a("v_add_u32 v8, v12, v14")
    for t in range(2):
        for r in range(4):
            a(f"buffer_load_short_d16_hi v{56+4*t+r}, v8, s[20:23], 0 offen offset:{32*t+1024*r}")
    ST.stamp_at(a, 2)
    a("v_lshlrev_b32 v14, 12, v13")
    a("v_lshlrev_b32 v15, 1, v11")
    a("v_add_u32 v9, v14, v15")
    a("s_lshl_b32 s35, s29, 4")
    a("v_add_u32 v11, s35, v2")
    a("v_lshlrev_b32 v11, 8, v11")
    for m in range(4):
        a(f"v_add_u32 v12, {4*m}, v3")
        a("v_xor_b32 v12, v12, v2")
        a("v_lshlrev_b32 v12, 4, v12")
        a(f"v_add_u32 v{16+m}, v11, v12")
    a("v_lshrrev_b32 v11, 2, v2")
    a("v_lshlrev_b32 v12, 3, v3")
    a("v_add_u32 v12, v12, v11")
    a("v_lshlrev_b32 v12, 7, v12")
    a("v_lshrrev_b32 v11, 1, v11")
    a("v_and_b32 v13, 1, v3")
    a("v_lshlrev_b32 v13, 1, v13")
    a("v_or_b32 v11, v11, v13")
    a("s_lshl_b32 s35, s30, 1")
    a("v_xor_b32 v11, s35, v11")
    a("v_lshlrev_b32 v13, 5, v11")
    a("v_and_b32 v14, 3, v1")
    a("v_lshlrev_b32 v14, 3, v14")
    a("v_add_u32 v12, v12, v14")
    a(f"v_add_u32 v12, {WOB}, v12")
    a("v_add_u32 v20, v12, v13")
    a("v_xor_b32 v13, 32, v13")
    a("v_add_u32 v21, v12, v13")
    for i in range(24, 32): a(f"v_mov_b32 v{i}, 0")
    FR = [32, 44]
    def reads(s, st):
        b = FR[st]
        a(f"ds_read_b128 v[{b}:{b+3}], v{16 + (s & 3)} offset:{(s >> 2)*16384}")
        for t in range(2):
            a(f"ds_read_b64_tr_b16 v[{b+4+4*t}:{b+5+4*t}], v{20+t} offset:{s*4096}")
            a(f"ds_read_b64_tr_b16 v[{b+6+4*t}:{b+7+4*t}], v{20+t} offset:{s*4096+512}")
    def mm(st):
        b = FR[st]
        a(f"v_mfma_f32_16x16x32_bf16 v[24:27], v[{b}:{b+3}], v[{b+4}:{b+7}], v[24:27]")
        a(f"v_mfma_f32_16x16x32_bf16 v[28:31], v[{b}:{b+3}], v[{b+8}:{b+11}], v[28:31]")
    for c in range(4):
        a(f"s_waitcnt vmcnt({8 + 4*(3-c)})")
        a("s_barrier")
        if c == 0: ST.stamp_at(a, 3)
        reads(4*c, 0)
        for m in range(4):
            s = 4*c + m
            if m < 3:
                reads(s + 1, (m + 1) & 1)
                a("s_waitcnt lgkmcnt(5)")
            else:
                a("s_waitcnt lgkmcnt(0)")
            mm(m & 1)
    ST.stamp_at(a, 4)
    a("s_waitcnt vmcnt(0)")
    if layer == 0:
        a(f"s_add_u32 s12, s8, {WS_X1T}")
    else:
        a(f"s_add_u32 s12, s8, {WS_X3T}")
    a("s_addc_u32 s13, s9, 0")
    a(f"s_add_u32 s16, s8, {WS_STATS0 if layer == 0 else WS_STATS1}"); a("s_addc_u32 s17, s9, 0"); a("s_mov_b32 s18, 0x4000")
    for t in range(2):
        acc = 24 + 4*t
        a(f"v_cvt_pk_bf16_f32 v64, v{acc}, v{acc+1}")
        a(f"v_cvt_pk_bf16_f32 v65, v{acc+2}, v{acc+3}")
        a(f"v_lshlrev_b32 v{acc}, 16, v64")
        a(f"v_and_b32 v{acc+1}, 0xffff0000, v64")
        a(f"v_lshlrev_b32 v{acc+2}, 16, v65")
        a(f"v_and_b32 v{acc+3}, 0xffff0000, v65")
        a(f"v_pk_add_f32 v[{acc}:{acc+1}], v[{acc}:{acc+1}], v[{56+4*t}:{57+4*t}]")
        a(f"v_pk_add_f32 v[{acc+2}:{acc+3}], v[{acc+2}:{acc+3}], v[{58+4*t}:{59+4*t}]")
        a(f"v_cvt_pk_bf16_f32 v{70+2*t}, v{acc}, v{acc+1}")
        a(f"v_cvt_pk_bf16_f32 v{71+2*t}, v{acc+2}, v{acc+3}")
        a(f"s_mov_b32 s44, {t*16*4096}")
        a(f"buffer_store_dwordx2 v[{70+2*t}:{71+2*t}], v9, s[12:15], s44 offen")
    a("v_pk_add_f32 v[76:77], v[24:25], v[28:29]")
    a("v_pk_add_f32 v[78:79], v[26:27], v[30:31]")
    a("v_pk_mul_f32 v[80:81], v[24:25], v[24:25]")
    a("v_pk_mul_f32 v[82:83], v[26:27], v[26:27]")
    a("v_pk_fma_f32 v[80:81], v[28:29], v[28:29], v[80:81]")
    a("v_pk_fma_f32 v[82:83], v[30:31], v[30:31], v[82:83]")
    for sh in (8, 4, 2, 1):
        for i in range(8):
            a(f"v_add_f32_dpp v{76+i}, v{76+i}, v{76+i} row_ror:{sh} row_mask:0xf bank_mask:0xf")
    a("s_barrier")
    a("s_lshl_b32 s44, s30, 9")
    a("s_lshl_b32 s45, s29, 6")
    a("s_add_u32 s44, s44, s45")
    a("v_lshlrev_b32 v11, 4, v3")
    a("v_add_u32 v11, s44, v11")
    a("v_cmp_eq_u32 vcc, 0, v2")
    a("s_and_saveexec_b64 s[46:47], vcc")
    a("ds_write_b128 v11, v[76:79]")
    a("ds_write_b128 v11, v[80:83] offset:256")
    a("s_mov_b64 exec, s[46:47]")
    a("s_waitcnt lgkmcnt(0)")
    a("s_barrier")
    a("s_cmp_gt_u32 s28, 1")
    a(f"s_cbranch_scc1 {P}_NOAT")
    a("s_lshl_b32 s44, s28, 8")
    a("v_lshlrev_b32 v11, 2, v1")
    a("v_add_u32 v12, s44, v11")
    a("ds_read_b32 v13, v12")
    a("ds_read_b32 v14, v12 offset:512")
    a("s_lshl_b32 s44, s28, 13")
    a("s_lshl_b32 s45, s36, 2")
    a("s_add_u32 s44, s44, s45")
    a("s_waitcnt lgkmcnt(0)")
    a("v_add_f32 v13, v13, v14")
    a("buffer_atomic_add_f32 v13, v11, s[16:19], s44 offen")
    a.label(f"{P}_NOAT")
    ST.stamp_at(a, 5)
    if stamps:
        a("s_waitcnt vmcnt(0)")
        ST.stamp_at(a, 6); ST.real_at(a, 11)
        ST.dump(a, 8, 9, 28, n=12)
    a.label(f"{P}_END")
    a("s_endpgm")
    return a.text(), kernel_desc(name, 96, 100 if stamps else 48), A2_LDS
```

```python
from asmlib import *
from layout import *
KA = 0
UB = 16640
UCH = 4608
XB = UB + 2*UCH
RB = XB + 2*4096
B_LDS = RB + 16384

def gen_b(name, layer, stamps=False):
    a = Asm(); P = name.upper(); ST = Stamps(stamps)
    a.raw(kernel_header(name))
    a("s_cmp_ge_u32 s2, 256")
    a(f"s_cbranch_scc1 {P}_END")
    ST.stamp_at(a, 0); ST.real_at(a, 10)
    a(f"s_load_dwordx2 s[8:9], s[0:1], {KA_WS}")
    a(f"s_load_dwordx2 s[6:7], s[0:1], {KA_DSKIP}")
    if layer == 1: a(f"s_load_dwordx2 s[4:5], s[0:1], {KA_OUT}")
    a("v_and_b32 v1, 63, v0")
    a("v_lshrrev_b32 v11, 6, v0")
    a("v_and_b32 v2, 15, v1")
    a("v_readfirstlane_b32 s28, v11")
    a("v_lshrrev_b32 v3, 4, v1")
    a("s_and_b32 s33, s2, 7")
    a("s_lshr_b32 s34, s2, 3")
    a("s_lshl_b32 s31, s33, 5")
    a("s_add_u32 s31, s31, s34")
    a("s_and_b32 s29, s28, 1")
    a("s_lshr_b32 s30, s28, 1")
    a("s_waitcnt lgkmcnt(0)")
    a(f"s_add_u32 s12, s8, {WS_X1T if layer == 0 else WS_X3T}"); a("s_addc_u32 s13, s9, 0"); a("s_mov_b32 s14, 0x200000"); a("s_mov_b32 s15, 0x20000")
    a(f"s_add_u32 s16, s8, {WS_STATS0 if layer == 0 else WS_STATS1}"); a("s_addc_u32 s17, s9, 0"); a("s_mov_b32 s18, 0x4000"); a("s_mov_b32 s19, 0x20000")
    a(f"s_add_u32 s20, s8, {WS_KT}"); a("s_addc_u32 s21, s9, 0"); a(f"s_mov_b32 s22, {512*KT_CH}"); a("s_mov_b32 s23, 0x20000")
    a("v_lshlrev_b32 v4, 4, v0")
    a("s_lshl_b32 s35, s31, 13")
    a("buffer_load_dwordx4 v[20:23], v4, s[12:15], s35 offen")
    a("s_add_u32 s36, s35, 4096")
    a("buffer_load_dwordx4 v[24:27], v4, s[12:15], s36 offen")
    a("v_lshlrev_b32 v5, 5, v0")
    a("buffer_load_dwordx4 v[28:31], v5, s[16:19], 0 offen")
    a("buffer_load_dwordx4 v[32:35], v5, s[16:19], 0 offen offset:16")
    a("s_mov_b32 s37, 8192")
    a("buffer_load_dwordx4 v[36:39], v5, s[16:19], s37 offen")
    a("buffer_load_dwordx4 v[40:43], v5, s[16:19], s37 offen offset:16")
    a(f"s_mul_i32 s38, s31, {2*KT_CH}")
    a("v_lshlrev_b32 v6, 4, v1")
    for i in range(4):
        a(f"s_lshl_b32 s39, s28, 10")
        a(f"s_add_u32 s39, s39, {i*4096}")
        a("s_mov_b32 m0, s39")
        a("s_add_u32 s40, s38, s39")
        a("buffer_load_dwordx4 v6, s[20:23], s40 offen lds")
    a("s_cmp_lg_u32 s28, 0")
    a(f"s_cbranch_scc1 {P}_NK")
    a("s_mov_b32 m0, 16384")
    a("s_add_u32 s40, s38, 16384")
    a("s_mov_b64 exec, 0xffff")
    a("buffer_load_dwordx4 v6, s[20:23], s40 offen lds")
    a("s_mov_b64 exec, -1")
    a.label(f"{P}_NK")
    a("s_lshl_b32 s39, s31, 2")
    a("s_load_dword s41, s[6:7], s39")
    a("v_cmp_gt_u32 vcc, 64, v0")
    a("s_and_saveexec_b64 s[42:43], vcc")
    a("v_lshrrev_b32 v7, 5, v0")
    a(f"v_mul_u32_u24 v7, {UCH}, v7")
    a("v_and_b32 v8, 31, v0")
    a("v_lshlrev_b32 v8, 4, v8")
    a("v_add_u32 v7, v7, v8")
    for i in range(4): a(f"v_mov_b32 v{44+i}, 0")
    a(f"ds_write_b128 v7, v[44:47] offset:{UB}")
    a("s_mov_b64 exec, s[42:43]")
    ST.stamp_at(a, 1)
    a("s_mov_b32 s44, 0x3b000000")
    a("s_mov_b32 s45, 0x3727c5ac")
    a("s_waitcnt vmcnt(0)")
    ST.stamp_at(a, 2)
    for i in range(8):
        m, s = 28 + i, 36 + i
        a(f"v_mul_f32 v{m}, s44, v{m}")
        a(f"v_mul_f32 v{s}, s44, v{s}")
        a(f"v_fma_f32 v{s}, -v{m}, v{m}, v{s}")
        a(f"v_max_f32 v{s}, 0, v{s}")
        a(f"v_cvt_pk_bf16_f32 v48, v{m}, v{s}")
        a(f"v_lshlrev_b32 v{m}, 16, v48")
        a(f"v_and_b32 v{s}, 0xffff0000, v48")
        a(f"v_add_f32 v{s}, s45, v{s}")
        a(f"v_cvt_pk_bf16_f32 v48, v{s}, v{s}")
        a(f"v_lshlrev_b32 v{s}, 16, v48")
        a(f"v_sqrt_f32 v{s}, v{s}")
        a(f"v_cvt_pk_bf16_f32 v48, v{s}, v{s}")
        a(f"v_lshlrev_b32 v{s}, 16, v48")
        a(f"v_rcp_f32 v{s}, v{s}")
    for ch in range(2):
        xb = 20 + 4*ch
        ub = 52 + 4*ch
        for d in range(4):
            a(f"v_lshlrev_b32 v48, 16, v{xb+d}")
            a(f"v_and_b32 v49, 0xffff0000, v{xb+d}")
            a(f"v_pk_add_f32 v[48:49], v[48:49], v[{28+2*d}:{29+2*d}] neg_lo:[0,1] neg_hi:[0,1]")
            a(f"v_cvt_pk_bf16_f32 v50, v48, v49")
            a(f"v_lshlrev_b32 v48, 16, v50")
            a(f"v_and_b32 v49, 0xffff0000, v50")
            a(f"v_pk_mul_f32 v[48:49], v[48:49], v[{36+2*d}:{37+2*d}]")
            a(f"v_cvt_pk_bf16_f32 v{ub+d}, v48, v49")
        a(f"ds_write_b128 v4, v[{ub}:{ub+3}] offset:{UB + ch*UCH + 512}")
        a(f"ds_write_b128 v4, v[{xb}:{xb+3}] offset:{XB + ch*4096}")
    a("v_and_b32 v11, 1, v2")
    a("s_lshl_b32 s46, s29, 1")
    a("v_add_u32 v11, s46, v11")
    a("v_mul_u32_u24 v11, 4160, v11")
    a("v_lshrrev_b32 v12, 1, v2")
    a("v_lshlrev_b32 v13, 2, v3")
    a("v_sub_u32 v13, v13, v12")
    a("s_lshl_b32 s46, s30, 6")
    a(f"s_sub_u32 s46, {1015 - 48}, s46")
    a("v_add_u32 v13, s46, v13")
    a("v_lshlrev_b32 v13, 2, v13")
    a("v_add_u32 v11, v11, v13")
    for s in range(8):
        a(f"v_subrev_u32 v{60+s}, {512*s}, v11")
    a("v_lshlrev_b32 v12, 5, v2")
    a("v_lshlrev_b32 v13, 4, v3")
    a("v_add_u32 v12, v12, v13")
    a(f"s_mul_i32 s46, s29, {UCH}")
    a("s_lshl_b32 s47, s30, 8")
    a("s_sub_u32 s46, s46, s47")
    a(f"s_add_u32 s46, s46, {UB}")
    a("v_add_u32 v68, s46, v12")
    for i in range(32): a(f"v_mov_b32 v{72+i}, 0")
    a("s_waitcnt lgkmcnt(0)")
    a("s_barrier")
    ST.stamp_at(a, 3)
    AF = [104, 168]
    def reads(rp, st):
        b = AF[st]
        for tau in range(8):
            a(f"ds_read_b128 v[{b+32+4*tau}:{b+35+4*tau}], v68 offset:{480 + 512*tau - 64*rp}")
        for s in range(8):
            o = 16*(3 - rp)
            a(f"ds_read2_b32 v[{b+4*s}:{b+4*s+1}], v{60+s} offset0:{o} offset1:{o+1}")
            a(f"ds_read2_b32 v[{b+4*s+2}:{b+4*s+3}], v{60+s} offset0:{o+2} offset1:{o+3}")
    def mm(st):
        b = AF[st]
        for s in range(8):
            for t in range(s, 8):
                tau = t - s
                a(f"v_mfma_f32_16x16x32_bf16 v[{72+4*t}:{75+4*t}], v[{b+4*s}:{b+4*s+3}], v[{b+32+4*tau}:{b+35+4*tau}], v[{72+4*t}:{75+4*t}]")
    reads(0, 0)
    a("s_waitcnt lgkmcnt(0)")
    for rp in range(4):
        if rp < 3: reads(rp + 1, (rp + 1) & 1)
        mm(rp & 1)
        a("s_waitcnt lgkmcnt(0)")
    ST.stamp_at(a, 4)
    a("s_lshl_b32 s46, s28, 12")
    a("v_lshlrev_b32 v11, 4, v1")
    a("v_add_u32 v12, s46, v11")
    a("s_xor_b32 s47, s28, 2")
    a("s_lshl_b32 s47, s47, 12")
    a("v_add_u32 v13, s47, v11")
    a("s_cmp_eq_u32 s30, 0")
    a(f"s_cbranch_scc0 {P}_H1")
    a.fence(8)
    for k in range(4): a(f"ds_write_b128 v12, v[{72+16+4*k}:{75+16+4*k}] offset:{RB + 1024*k}")
    a(f"s_branch {P}_HJ")
    a.label(f"{P}_H1")
    a.fence(8)
    for k in range(4):
        a(f"ds_write_b128 v12, v[{72+4*k}:{75+4*k}] offset:{RB + 1024*k}")
    for i in range(16): a(f"v_mov_b32 v{72+i}, v{88+i}")
    a.label(f"{P}_HJ")
    a("s_waitcnt lgkmcnt(0)")
    a("s_barrier")
    for k in range(4): a(f"ds_read_b128 v[{104+4*k}:{107+4*k}], v13 offset:{RB + 1024*k}")
    a("v_lshlrev_b32 v14, 5, v2")
    a("v_lshlrev_b32 v15, 3, v3")
    a("v_add_u32 v14, v14, v15")
    a("s_lshl_b32 s46, s30, 11")
    a("v_add_u32 v14, s46, v14")
    a(f"s_mul_i32 s47, s29, {UCH}")
    a("v_add_u32 v15, s47, v14")
    a("s_lshl_b32 s47, s29, 12")
    a("v_add_u32 v16, s47, v14")
    for k in range(4):
        a(f"ds_read_b64 v[{120+2*k}:{121+2*k}], v15 offset:{UB + 512 + 512*k}")
        a(f"ds_read_b64 v[{128+2*k}:{129+2*k}], v16 offset:{XB + 512*k}")
    a("s_waitcnt lgkmcnt(0)")
    a("s_lshl_b32 s48, s41, 16")
    a("s_and_b32 s49, s41, 0xffff0000")
    a("s_cmp_eq_u32 s29, 0")
    a("s_cselect_b32 s48, s48, s49")
    a("v_mov_b32 v136, s48")
    a("s_barrier")
    for k in range(4):
        acc = 72 + 4*k
        a(f"v_pk_add_f32 v[{acc}:{acc+1}], v[{acc}:{acc+1}], v[{104+4*k}:{105+4*k}]")
        a(f"v_pk_add_f32 v[{acc+2}:{acc+3}], v[{acc+2}:{acc+3}], v[{106+4*k}:{107+4*k}]")
        for d in range(2):
            y = acc + 2*d
            a(f"v_cvt_pk_bf16_f32 v140, v{y}, v{y+1}")
            a(f"v_lshlrev_b32 v{y}, 16, v140")
            a(f"v_and_b32 v{y+1}, 0xffff0000, v140")
            a(f"v_lshlrev_b32 v142, 16, v{120+2*k+d}")
            a(f"v_and_b32 v143, 0xffff0000, v{120+2*k+d}")
            a(f"v_pk_mul_f32 v[142:143], v[142:143], v[136:137] op_sel:[0,0] op_sel_hi:[1,0]")
            a(f"v_cvt_pk_bf16_f32 v140, v142, v143")
            a(f"v_lshlrev_b32 v142, 16, v140")
            a(f"v_and_b32 v143, 0xffff0000, v140")
            a(f"v_pk_add_f32 v[{y}:{y+1}], v[{y}:{y+1}], v[142:143]")
            a(f"v_cvt_pk_bf16_f32 v140, v{y}, v{y+1}")
            a(f"v_lshlrev_b32 v{y}, 16, v140")
            a(f"v_and_b32 v{y+1}, 0xffff0000, v140")
            a(f"v_lshlrev_b32 v142, 16, v{128+2*k+d}")
            a(f"v_and_b32 v143, 0xffff0000, v{128+2*k+d}")
            a(f"v_pk_add_f32 v[{y}:{y+1}], v[{y}:{y+1}], v[142:143]")
            a(f"v_cvt_pk_bf16_f32 v{144+2*k+d}, v{y}, v{y+1}")
        a(f"ds_write_b64 v16, v[{144+2*k}:{145+2*k}] offset:{RB + 512*k}")
    a("s_waitcnt lgkmcnt(0)")
    a("s_barrier")
    ST.stamp_at(a, 5)
    a(f"ds_read_b128 v[20:23], v4 offset:{RB}")
    a(f"ds_read_b128 v[24:27], v4 offset:{RB + 4096}")
    if layer == 0:
        a(f"s_add_u32 s12, s8, {WS_X2}"); a("s_addc_u32 s13, s9, 0")
    else:
        a("s_mov_b32 s12, s4"); a("s_mov_b32 s13, s5")
    a("v_lshlrev_b32 v5, 13, v0")
    a("s_lshl_b32 s46, s31, 2")
    a("s_mov_b32 s50, 0x05040100")
    a("s_mov_b32 s51, 0x07060302")
    a("s_waitcnt lgkmcnt(0)")
    for d in range(4):
        a(f"v_perm_b32 v{30+2*d}, v{24+d}, v{20+d}, s50")
        a(f"v_perm_b32 v{31+2*d}, v{24+d}, v{20+d}, s51")
    for r in range(8):
        if r == 4: a("s_add_u32 s46, s46, 4096")
        a(f"buffer_store_dword v{30+r}, v5, s[12:15], s46 offen offset:{(r & 3)*1024}")
    ST.stamp_at(a, 6)
    if stamps:
        a("s_waitcnt vmcnt(0)")
        ST.stamp_at(a, 7); ST.real_at(a, 11)
        ST.dump(a, 8, 9, 28, n=12)
    a.label(f"{P}_END")
    a("s_endpgm")
    return a.text(), kernel_desc(name, 232, 100 if stamps else 56), B_LDS
```

```python
from asmlib import *
from layout import *

ROWP = 544
TAB = 64 * ROWP
TT_OFF = 0
TT_CH = 4112
TABBASE = 8448
KG_LDS = TABBASE + 2 * TAB

def cmul(a, z, x, y, t):
    a(f"v_pk_mul_f32 v[{t}:{t+1}], v[{x}:{x+1}], v[{y}:{y+1}] op_sel:[0,0] op_sel_hi:[0,1]")
    a(f"v_pk_fma_f32 v[{z}:{z+1}], v[{x}:{x+1}], v[{y}:{y+1}], v[{t}:{t+1}] op_sel:[1,1,0] op_sel_hi:[1,0,1] neg_lo:[1,0,0]")

def gen_kgen(name="kg_kernel"):
    a = Asm()
    a.raw(kernel_header(name))
    a("s_cmp_ge_u32 s2, 256")
    a("s_cbranch_scc1 KG_END")
    a(f"s_load_dwordx8 s[8:15], s[0:1], {KA_LOGA}")
    a(f"s_load_dwordx2 s[16:17], s[0:1], {KA_LOGDT}")
    a(f"s_load_dwordx2 s[18:19], s[0:1], {KA_WS}")
    a("v_lshrrev_b32 v1, 6, v0")
    a("v_and_b32 v2, 63, v0")
    a("v_readfirstlane_b32 s20, v1")
    a("s_lshr_b32 s21, s20, 1")
    a("s_and_b32 s22, s20, 1")
    a("s_lshl_b32 s23, s2, 1")
    a("s_add_u32 s23, s23, s21")
    a("s_lshl_b32 s24, s22, 6")
    a("v_add_u32 v3, s24, v2")
    a("s_lshl_b32 s25, s23, 8")
    a("v_lshlrev_b32 v4, 1, v3")
    a("v_add_u32 v4, s25, v4")
    a("s_lshl_b32 s26, s23, 1")
    a("v_mov_b32 v5, s26")
    a("s_waitcnt lgkmcnt(0)")
    a("global_load_ushort v10, v4, s[8:9]")
    a("global_load_ushort v11, v4, s[10:11]")
    a("global_load_ushort v12, v4, s[12:13]")
    a("global_load_ushort v13, v4, s[14:15]")
    a("global_load_ushort v14, v5, s[16:17]")
    a(f"s_mul_i32 s27, s21, {TAB}")
    a(f"s_add_u32 s27, s27, {TABBASE}")
    a("v_lshlrev_b32 v6, 2, v3")
    a("v_add_u32 v6, s27, v6")
    a("s_mov_b32 s28, 0x3fb8aa3b")
    a("s_mov_b32 s29, 0x3e22f983")
    a("s_waitcnt vmcnt(0)")
    for r in (10, 11, 12, 13, 14):
        a(f"v_lshlrev_b32 v{r}, 16, v{r}")
    a("v_mul_f32 v14, s28, v14")
    a("v_mul_f32 v10, s28, v10")
    a("v_exp_f32 v14, v14")
    a("v_exp_f32 v10, v10")
    a("v_cvt_pk_bf16_f32 v15, v14, v10")
    a("v_lshlrev_b32 v14, 16, v15")
    a("v_and_b32 v10, 0xffff0000, v15")
    a("v_mul_f32 v10, v10, v14")
    a("v_mul_f32 v11, v11, v14")
    a("v_add_f32 v14, v14, v14")
    a("v_mul_f32 v16, v12, v14")
    a("v_mul_f32 v17, v13, v14")
    a("v_mul_f32 v10, s28, v10")
    a("v_mul_f32 v11, s29, v11")
    for (p, r) in ((1.0, 20), (8.0, 22), (128.0, 24)):
        import struct
        bits = struct.unpack("<I", struct.pack("<f", p))[0]
        a(f"v_mul_f32 v18, {hex(bits)}, v10")
        a(f"v_mul_f32 v19, {hex(bits)}, v11")
        a("v_exp_f32 v18, -v18")
        a("v_fract_f32 v19, v19")
        a(f"v_cos_f32 v{r}, v19")
        a(f"v_sin_f32 v{r+1}, v19")
        a(f"v_mul_f32 v{r}, v{r}, v18")
        a(f"v_mul_f32 v{r+1}, v{r+1}, v18")
    E1, E8, E128, C = 20, 22, 24, 16
    T = 26
    def wr(row, reg, negim):
        a(f"v_cvt_pk_bf16_f32 v30, v{reg}, {'-' if negim else ''}v{reg+1}")
        a(f"ds_write_b32 v6, v30 offset:{row*ROWP}")
    def wr2(row, reg, negim, tmp):
        a(f"v_cvt_pk_bf16_f32 v{tmp}, v{reg}, {'-' if negim else ''}v{reg+1}")
        a(f"ds_write_b32 v6, v{tmp} offset:{row*ROWP}")
    tmpc = [60, 61, 62, 63]
    tc = [0]
    def W(row, reg, negim):
        t = tmpc[tc[0] % 4]; tc[0] += 1
        wr2(row, reg, negim, t)
    a("v_mov_b32 v28, 1.0"); a("v_mov_b32 v29, 0")
    W(48, 28, False)
    W(49, E8, False)
    cur, nxt = 32, 34
    cmul(a, cur, E8, E8, T); W(50, cur, False)
    for j in range(3, 16):
        cmul(a, nxt, cur, E8, T); W(48 + j, nxt, False); cur, nxt = nxt, cur
    P = {1: E1}
    for b in range(2, 8):
        P[b] = 40 + 2 * (b - 2)
        cmul(a, P[b], P[b-1], E1, T)
    q, qn, z = C, 36, 38
    for aa in range(17):
        if aa > 0:
            cmul(a, qn, q, E128, T)
            q, qn = qn, (52 if qn == 36 else 36)
        if aa < 2:   rows = [(8*aa + b, b) for b in range(8)]
        elif aa < 4: rows = [(16 + 4*(aa-2) + i, 2*i) for i in range(4)]
        elif aa < 8: rows = [(16 + 8 + 2*(aa-4) + i, 4*i) for i in range(2)]
        else:        rows = [(32 + aa - 8, 0)]
        for (row, b) in rows:
            if b == 0: W(row, q, True)
            else:
                zz = 54 + 2 * (tc[0] % 2)
                cmul(a, zz, q, P[b], T if tc[0] % 2 == 0 else 58)
                W(row, zz, True)
    a("s_waitcnt lgkmcnt(0)")
    a("s_barrier")
    a("v_and_b32 v7, 15, v2")
    a("v_lshrrev_b32 v8, 4, v2")
    a(f"v_mul_u32_u24 v9, {ROWP}, v7")
    a("v_lshlrev_b32 v31, 4, v8")
    a("v_add_u32 v9, v9, v31")
    a("v_add_u32 v9, s27, v9")
    for s in range(8):
        a(f"ds_read_b128 v[{64+4*s}:{67+4*s}], v9 offset:{48*ROWP + 64*s}")
    a("s_cmp_eq_u32 s22, 0")
    a("s_cbranch_scc0 KG_H1")
    for s in range(8):
        a(f"ds_read_b128 v[{96+4*s}:{99+4*s}], v9 offset:{0*ROWP + 64*s}")
    for i in range(8): a(f"v_mov_b32 v{40+i}, 0")
    a("s_waitcnt lgkmcnt(0)")
    for s in range(8):
        a(f"v_mfma_f32_16x16x32_bf16 v[40:43], v[{96+4*s}:{99+4*s}], v[{64+4*s}:{67+4*s}], v[40:43]")
    for s in range(8):
        a(f"ds_read_b128 v[{96+4*s}:{99+4*s}], v9 offset:{32*ROWP + 64*s}")
    a("s_waitcnt lgkmcnt(0)")
    for s in range(8):
        a(f"v_mfma_f32_16x16x32_bf16 v[44:47], v[{96+4*s}:{99+4*s}], v[{64+4*s}:{67+4*s}], v[44:47]")
    a(f"s_mul_i32 s30, s21, {TT_CH}")
    a(f"s_add_u32 s30, s30, {TT_OFF}")
    a("v_lshrrev_b32 v50, 1, v8")
    a("v_lshlrev_b32 v50, 8, v50")
    a("v_and_b32 v51, 1, v8")
    a("v_lshlrev_b32 v51, 3, v51")
    a("v_add_u32 v50, v50, v51")
    a("v_lshlrev_b32 v52, 4, v7")
    a("v_add_u32 v50, v50, v52")
    a("v_add_u32 v50, s30, v50")
    for r in range(4):
        a(f"v_cvt_pk_bf16_f32 v{54+r}, v{40+r}, v{40+r}")
        a(f"ds_write_b16 v50, v{54+r} offset:{2*r}")
    a("v_lshlrev_b32 v50, 10, v8")
    a("v_add_u32 v50, v50, v52")
    a("v_add_u32 v50, s30, v50")
    for r in range(4):
        a(f"v_cvt_pk_bf16_f32 v{54+r}, v{44+r}, v{44+r}")
    a("v_cmp_gt_u32 vcc, 32, v2")
    a("s_and_saveexec_b64 s[32:33], vcc")
    for r in range(4):
        a(f"ds_write_b16 v50, v{54+r} offset:{2048 + 256*r}")
    a("s_mov_b64 exec, s[32:33]")
    a("v_cmp_eq_u32 vcc, 32, v2")
    a("s_and_saveexec_b64 s[32:33], vcc")
    a("ds_write_b16 v50, v54 offset:2048")
    a("v_mov_b32 v51, 0")
    a("v_mov_b32 v52, s30")
    a("ds_write_b32 v52, v51 offset:4100")
    a("s_mov_b64 exec, s[32:33]")
    a("s_branch KG_JOIN")
    a.label("KG_H1")
    for s in range(8):
        a(f"ds_read_b128 v[{96+4*s}:{99+4*s}], v9 offset:{16*ROWP + 64*s}")
    for i in range(4): a(f"v_mov_b32 v{40+i}, 0")
    a("s_waitcnt lgkmcnt(0)")
    for s in range(8):
        a(f"v_mfma_f32_16x16x32_bf16 v[40:43], v[{96+4*s}:{99+4*s}], v[{64+4*s}:{67+4*s}], v[40:43]")
    a(f"s_mul_i32 s30, s21, {TT_CH}")
    a(f"s_add_u32 s30, s30, {TT_OFF}")
    a("v_lshlrev_b32 v52, 4, v7")
    a("v_add_u32 v52, s30, v52")
    a("v_lshlrev_b32 v50, 8, v8")
    a("v_add_u32 v50, 512, v50")
    a("v_lshlrev_b32 v51, 9, v8")
    a("v_cmp_gt_u32 vcc, 32, v2")
    for r in range(4):
        a(f"v_add_u32 v53, {4*r}, v50")
        a(f"v_add_u32 v58, {2*(128*(r>>1) + 4*(r&1))}, v51")
        a("v_cndmask_b32 v53, v58, v53, vcc")
        a("v_add_u32 v53, v53, v52")
        a(f"v_cvt_pk_bf16_f32 v54, v{40+r}, v{40+r}")
        a("ds_write_b16 v53, v54")
    a.label("KG_JOIN")
    a("s_waitcnt lgkmcnt(0)")
    a("s_barrier")
    a("v_lshlrev_b32 v10, 4, v0")
    a("v_sub_u32 v10, 4094, v10")
    for e in range(9):
        a(f"v_subrev_u32 v{20+e}, {2*e}, v10")
        a(f"v_cvt_f32_i32 v{20+e}, v{20+e}")
    for e in range(0, 10, 2):
        if e + 1 < 9:
            a(f"v_cvt_pk_bf16_f32 v30, v{20+e}, v{20+e+1}")
            a(f"v_lshlrev_b32 v{20+e}, 16, v30")
            a(f"v_and_b32 v{20+e+1}, 0xffff0000, v30")
        else:
            a(f"v_cvt_pk_bf16_f32 v30, v{20+e}, v{20+e}")
            a(f"v_lshlrev_b32 v{20+e}, 16, v30")
    for e in range(9):
        a(f"v_cvt_u32_f32 v{20+e}, v{20+e}")
    a("v_mov_b32 v31, 4100")
    a("v_cmp_eq_u32 vcc, 255, v0")
    a("v_cndmask_b32 v28, v28, v31, vcc")
    a(f"s_add_u32 s36, s18, {WS_KT}")
    a("s_addc_u32 s37, s19, 0")
    a(f"s_mov_b32 s38, {512*KT_CH}")
    a("s_mov_b32 s39, 0x20000")
    a("v_lshlrev_b32 v11, 4, v0")
    for ch in range(2):
        for e in range(9):
            a(f"ds_read_u16 v{40+16*ch+e}, v{20+e} offset:{TT_OFF + ch*TT_CH}")
    a("s_waitcnt lgkmcnt(0)")
    a(f"s_mul_i32 s40, s2, {2*KT_CH}")
    for ch in range(2):
        b = 40 + 16*ch
        o = 72 + 8*ch
        for d in range(4):
            a(f"v_lshl_or_b32 v{o+d}, v{b+2*d+2}, 16, v{b+2*d+1}")
            a(f"v_lshl_or_b32 v{o+4+d}, v{b+2*d+1}, 16, v{b+2*d}")
        a(f"s_add_u32 s41, s40, {ch*KT_CH}")
        a(f"buffer_store_dwordx4 v[{o}:{o+3}], v11, s[36:39], s41 offen")
        a(f"s_add_u32 s42, s41, {KT_PAR}")
        a(f"buffer_store_dwordx4 v[{o+4}:{o+7}], v11, s[36:39], s42 offen")
    a("v_cmp_gt_u32 vcc, 16, v0")
    a("s_and_saveexec_b64 s[32:33], vcc")
    a("s_cbranch_execz KG_END")
    a("v_lshrrev_b32 v12, 2, v0")
    a(f"v_mul_u32_u24 v12, {KT_PAR}, v12")
    a("v_and_b32 v13, 3, v0")
    a("v_lshlrev_b32 v13, 4, v13")
    a("v_add_u32 v12, v12, v13")
    a("v_add_u32 v12, 4096, v12")
    for i in range(4): a(f"v_mov_b32 v{90+i}, 0")
    a("buffer_store_dwordx4 v[90:93], v12, s[36:39], s40 offen")
    a.label("KG_END")
    a("s_endpgm")
    return a.text(), kernel_desc(name, 128, 48), KG_LDS
```

```python
WS_STATS0 = 0x0000
WS_STATS1 = 0x4000
WS_KT     = 0x100000
KT_CH     = 8320
KT_PAR    = 4160
WS_O      = 0x600000
WS_X1T    = 0x800000
WS_X2     = 0xA00000
WS_X3T    = 0xC00000
WS_END    = 0xE00000
KA_X, KA_WQKV, KA_WO, KA_U, KA_LOGA, KA_AIM, KA_CR, KA_CI, KA_LOGDT, KA_DSKIP, KA_OUT, KA_DBG, KA_WS = [8*i for i in range(13)]
```

```python
import sys
from asmlib import *
import k_kgen, k_a1, k_a2, k_b
NAME = "interleave_layers__sliding_local_dilated__ssm_conv_s4d__prompt"
HEAD = open(f"cdna_kernels/{NAME}.s.ref").read().split("; Override launch")[0]
def assemble(launches, kernels, path):
    s = HEAD
    for (n, g, b, lds) in launches:
        s += f"; @launch kernel={n} grid=({g},1,1) block=({b},1,1) lds={lds}\n"
    s += '.amdgcn_target "amdgcn-amd-amdhsa--gfx950"\n.text\n'
    for (t, d) in kernels: s += t
    s += '.section .rodata,"a"\n.p2align 6\n'
    for (t, d) in kernels: s += ".p2align 6\n" + d
    open(path, "w").write(s)
def full(path, stamp=None, upto=7, extra_triv=0):
    K = {}
    def mk(n, f, *args):
        t, d, lds = f(n, *args, **({"stamps": True} if stamp == n else {}))
        K[n] = (t, d, lds)
    t, d, lds = k_kgen.gen_kgen(); K["kg_kernel"] = (t, d, lds)
    mk("a1l0_kernel", k_a1.gen_a1, 0); mk("a2l0_kernel", k_a2.gen_a2, 0); mk("bl0_kernel", k_b.gen_b, 0)
    mk("a1l1_kernel", k_a1.gen_a1, 1); mk("a2l1_kernel", k_a2.gen_a2, 1); mk("bl1_kernel", k_b.gen_b, 1)
    order = [("kg_kernel", 256), ("a1l0_kernel", 512), ("a2l0_kernel", 512), ("bl0_kernel", 256), ("a1l1_kernel", 512), ("a2l1_kernel", 512), ("bl1_kernel", 256)][:upto]
    launches = [(n, 256, b, K[n][2]) for (n, b) in order]
    used = [n for (n, b) in order]
    assemble(launches, [(K[n][0], K[n][1]) for n in used], path)
if __name__ == "__main__":
    what = sys.argv[1]
    stamp = sys.argv[2] if len(sys.argv) > 2 else None
    if what == "full": full("full.s", stamp)
    if what == "final": full(f"cdna_kernels/{NAME}.s")
```

```python
import re

TRANS = ("v_exp_f32", "v_log_f32", "v_rcp_f32", "v_rsq_f32", "v_sqrt_f32", "v_sin_f32", "v_cos_f32", "v_rcp_iflag_f32")

def _expand(tok):
    tok = tok.strip()
    neg = tok.lstrip("-")
    m = re.fullmatch(r"(?:abs\()?([vsa])(\d+)\)?", neg)
    if m: return [(m.group(1), int(m.group(2)))]
    m = re.fullmatch(r"([vsa])\[(\d+):(\d+)\]", neg)
    if m: return [(m.group(1), i) for i in range(int(m.group(2)), int(m.group(3)) + 1)]
    if neg == "vcc": return [("s", "vcc")]
    if neg == "exec": return [("s", "exec")]
    if neg == "m0": return [("s", "m0")]
    return []

class Ins:
    __slots__ = ("text", "op", "ops", "dst", "src", "cls", "passes", "srcC", "srcAB", "raw")
    def __init__(self, text):
        self.text = text
        t = text.split(";")[0].strip()
        parts = t.split(None, 1)
        self.op = parts[0] if parts else ""
        rest = parts[1] if len(parts) > 1 else ""
        ops = []; depth = 0; cur = ""
        for ch in rest:
            if ch == "[": depth += 1
            if ch == "]": depth -= 1
            if ch == "," and depth == 0: ops.append(cur.strip()); cur = ""
            else: cur += ch
        if cur.strip(): ops.append(cur.strip())
        clean = []
        for o in ops:
            clean.append(o.split()[0] if o.split() else o)
        self.ops = clean
        op = self.op
        self.dst = []; self.src = []; self.passes = 0; self.srcC = []; self.srcAB = []
        R = [_expand(o) for o in clean]
        if op.startswith("v_mfma"):
            self.cls = "mfma"
            self.dst = R[0]; self.srcAB = R[1] + R[2]; self.srcC = R[3] if len(R) > 3 else []
            self.src = self.srcAB + self.srcC
            self.passes = 8 if "32x32" in op else 4
        elif op.startswith("v_"):
            self.cls = "trans" if any(op.startswith(x) for x in TRANS) else "valu"
            if op.startswith("v_cmp"):
                self.dst = R[0]; self.src = sum(R[1:], [])
            elif op.startswith("v_permlane") and "swap" in op or op.startswith("v_swap"):
                self.dst = R[0] + R[1]; self.src = R[0] + R[1]
            elif op.startswith(("v_add_co", "v_sub_co", "v_addc_co", "v_subb_co", "v_subrev_co")):
                self.dst = R[0] + R[1]; self.src = sum(R[2:], [])
            else:
                self.dst = R[0]; self.src = sum(R[1:], [])
                if op.startswith(("v_fmac", "v_dot2c", "v_pk_fmac", "v_writelane")): self.src += R[0]
                if op.startswith("v_cndmask") and len(clean) == 3: self.src += [("s", "vcc")]
        elif op.startswith("ds_"):
            self.cls = "ds"
            if op.startswith(("ds_read", "ds_bpermute", "ds_permute", "ds_swizzle")):
                self.dst = R[0]; self.src = sum(R[1:], [])
            else:
                self.src = sum(R, [])
        elif op.startswith(("buffer_", "global_", "flat_")):
            self.cls = "vmem"
            isload = "_load_" in op
            lds = " lds" in (" " + t + " ").replace("\t", " ") and op.startswith("buffer_load") and re.search(r"\blds\b", t) is not None
            if op.startswith("global_load_lds"): lds = True
            if isload and not lds:
                self.dst = R[0]; self.src = sum(R[1:], [])
            else:
                self.src = sum(R, [])
            if lds: self.src += [("s", "m0")]
        elif op.startswith("s_"):
            self.cls = "salu"
            if op.startswith(("s_cmp", "s_cbranch", "s_branch", "s_waitcnt", "s_nop", "s_barrier", "s_endpgm", "s_setprio", "s_sleep")):
                self.src = sum(R, [])
            else:
                self.dst = R[0] if R else []; self.src = sum(R[1:], [])
                if "saveexec" in op: self.dst = self.dst + [("s", "exec")]
        else:
            self.cls = "other"
    def states(self):
        if self.op == "s_nop":
            return int(self.ops[0], 0) + 1
        return 1

def _vg(regs): return set(r for r in regs if r[0] in ("v", "a"))
def _sg(regs): return set(r for r in regs if r[0] == "s")

def need(p, c):
    n = 0
    pv = _vg(p.dst)
    valu_p = p.cls in ("valu", "trans")
    valu_c = c.cls in ("valu", "trans")
    if valu_p:
        if c.cls == "mfma" and pv & _vg(c.src): n = max(n, 2)
        if valu_c and pv & _vg(c.src):
            if c.op.startswith("v_permlane") or "dpp" in c.text or "row_" in c.text or "quad_perm" in c.text: n = max(n, 2)
            if c.op.startswith(("v_readlane", "v_readfirstlane")): n = max(n, 1)
            if p.cls == "trans" and c.cls != "trans": n = max(n, 1)
            if p.cls == "trans" and c.cls == "trans": n = max(n, 1)
        ps = _sg(p.dst)
        if ps:
            if valu_c and ps & _sg(c.src):
                n = max(n, 4 if c.op.startswith(("v_readlane", "v_writelane")) else 2)
            if c.cls == "vmem" and ps & _sg(c.src): n = max(n, 5)
            if c.cls == "salu" and ps & _sg(c.src): n = max(n, 1)
        if p.cls == "trans" and c.cls in ("ds", "vmem") and pv & _vg(c.src): n = max(n, 1)
    if p.cls == "mfma":
        tab_v = {4: 8, 8: 12}[p.passes]
        tab_c = {4: 6, 8: 10}[p.passes]
        war = {4: 3, 8: 7}[p.passes]
        if c.cls == "mfma":
            if pv & _vg(c.srcAB): n = max(n, tab_v)
            if pv & _vg(c.srcC):
                same = (p.dst == c.srcC and p.passes == c.passes)
                if not same: n = max(n, tab_c)
        else:
            if c.cls in ("valu", "trans", "ds", "vmem"):
                if pv & (_vg(c.src) | _vg(c.dst)): n = max(n, tab_v)
            if valu_c and _vg(p.srcC) & _vg(c.dst): n = max(n, war)
    if p.cls == "salu" and ("s", "m0") in p.dst:
        if c.cls == "vmem" and ("s", "m0") in c.src: n = max(n, 1)
    if p.cls == "vmem" and ("store" in p.op) and ("x3" in p.op or "x4" in p.op):
        data = _vg(_expand(p.ops[0]) if p.op.startswith("buffer") else _expand(p.ops[1]))
        if data & _vg(c.dst) and c.cls in ("valu", "trans", "mfma"): n = max(n, 2)
        elif data & _vg(c.dst): n = max(n, 1)
    if p.cls == "ds" and p.op.startswith("ds_write") and ("b128" in p.op or "b96" in p.op):
        pass
    if p.cls == "salu" and ("s", "exec") in p.dst and valu_c and (c.op.startswith("v_permlane") or "row_" in c.text or "quad_perm" in c.text):
        n = max(n, 1)
    return n

class Asm:
    def __init__(self):
        self.items = []
    def raw(self, s): self.items.append(s)
    def label(self, l): self.items.append(l + ":")
    def __call__(self, s):
        for line in s.split("\n"):
            line = line.strip()
            if not line: continue
            if line.startswith(";"): self.items.append("    " + line); continue
            if line.endswith(":") or line.startswith("."): self.items.append(line); continue
            self.items.append(Ins(line))
    def auto_on(self): self.items.append("__AUTO_ON__")
    def auto_off(self): self.items.append("__AUTO_OFF__")
    def _auto_lgkm(self):
        out = []; on = False; pend = []
        for it in self.items:
            if isinstance(it, str):
                if it == "__AUTO_ON__": on = True; pend = []; continue
                if it == "__AUTO_OFF__": on = False; continue
                if on and it.strip().endswith(":"): raise RuntimeError("label inside auto region: " + it)
                out.append(it); continue
            if not on:
                out.append(it); continue
            if it.op == "s_waitcnt":
                m = re.search(r"lgkmcnt\((\d+)\)", it.text)
                if m:
                    n = int(m.group(1)); pend = pend[len(pend)-n:] if n < len(pend) and n > 0 else ([] if n == 0 else pend)
                out.append(it); continue
            if it.op.startswith(("s_load", "s_buffer_load", "s_memtime")):
                if it.op != "s_memtime": raise RuntimeError("SMEM inside auto region")
            touched = _vg(it.src) | _vg(it.dst)
            need_i = -1
            for i, d in enumerate(pend):
                if d & touched: need_i = i
            if need_i >= 0:
                allowed = len(pend) - 1 - need_i
                allowed = min(allowed, 14)
                w = Ins(f"s_waitcnt lgkmcnt({allowed})"); out.append(w)
                pend = pend[len(pend)-allowed:] if allowed > 0 else []
            out.append(it)
            if it.cls == "ds": pend.append(_vg(it.dst))
        return out
    def resolve(self, window=24):
        out = []; hist = []
        nnop = 0
        for it in self._auto_lgkm():
            if isinstance(it, str):
                out.append(it); continue
            req = 0; dist = 0
            for p in reversed(hist[-window:]):
                n = need(p, it)
                if n > dist: req = max(req, n - dist)
                dist += p.states()
                if dist >= 20: break
            while req > 0:
                k = min(req, 16)
                nop = Ins(f"s_nop {k-1}")
                out.append(nop); hist.append(nop); req -= k; nnop += 1
            out.append(it); hist.append(it)
            if it.op in ("s_branch", "s_endpgm", "s_setpc_b64"):
                hist = []
        self.nnop = nnop
        return out
    def fence(self, n=12):
        while n > 0:
            k = min(n, 16); self(f"s_nop {k-1}"); n -= k
    def text(self):
        return "\n".join((it if isinstance(it, str) else "    " + it.text) for it in self.resolve()) + "\n"

def kernel_header(name):
    return f""".globl {name}
.p2align 8
.type {name},@function
{name}:
"""
def kernel_desc(name, vgpr, sgpr, accum=None, wgid_y=False):
    accum = accum if accum is not None else (vgpr + 3) // 4 * 4
    return f""".amdhsa_kernel {name}
  .amdhsa_next_free_vgpr {vgpr}
  .amdhsa_next_free_sgpr {sgpr}
  .amdhsa_accum_offset {accum}
  .amdhsa_group_segment_fixed_size 0
  .amdhsa_kernarg_size 104
  .amdhsa_user_sgpr_count 2
  .amdhsa_user_sgpr_kernarg_segment_ptr 1
  .amdhsa_system_sgpr_workgroup_id_x 1
.end_amdhsa_kernel
"""
def vr(a, n=1):
    return f"v{a}" if n == 1 else f"v[{a}:{a+n-1}]"
def sr(a, n=1):
    return f"s{a}" if n == 1 else f"s[{a}:{a+n-1}]"


class Stamps:
    def __init__(self, on): self.on = on; self.n = 0
    def stamp(self, a):
        if not self.on: return
        i = self.n; self.n += 1
        a(f"s_memtime s[{70+2*i}:{71+2*i}]")
    def stamp_at(self, a, i):
        if not self.on: return
        self.n = max(self.n, i + 1)
        a(f"s_memtime s[{70+2*i}:{71+2*i}]")
    def real_at(self, a, i):
        if not self.on: return
        self.n = max(self.n, i + 1)
        a(f"s_memrealtime s[{70+2*i}:{71+2*i}]")
    def dump(self, a, ws_lo, ws_hi, wave_sreg, off=0x8000000, n=None):
        if not self.on: return
        n = n or self.n
        a("s_waitcnt lgkmcnt(0)")
        a(f"s_add_u32 s64, s{ws_lo}, {off}")
        a(f"s_addc_u32 s65, s{ws_hi}, 0")
        a("s_mov_b32 s66, 0x1000000"); a("s_mov_b32 s67, 0x20000")
        a(f"s_lshl_b32 s68, s2, 3"); a(f"s_add_u32 s68, s68, s{wave_sreg}"); a("s_lshl_b32 s68, s68, 6")
        a("s_mov_b64 exec, 1")
        a("v_mov_b32 v1, 0")
        for i in range(n):
            a(f"v_mov_b32 v2, s{70+2*i}")
            a(f"buffer_store_dword v2, v1, s[64:67], s68 offen offset:{4*i}")
        a("s_mov_b64 exec, -1")
```

```python
from pk_common import *
EXPERIMENT = None
V_XOFF0, V_XOFF1, V_WOFF = 4, 5, 6
V_XA0, V_XA1 = 7, 8
V_WA0, V_WA1 = 9, 10
ONES = 20
ACC = dict(Qa=24, Qb=28, Ka=32, Kb=36, Va=40, Vb=44, ST=48, Qh=52, Kh=56, Vh=60, HS=52)
FR = [64, 100]
V_MK = 128
V_STA, V_SCW, V_SCR, V_KVA, V_OA, V_CSA, V_CSB = 164, 165, 166, 167, 168, 169, 170
V_EPS = 172
def XS(layer): return 10240 if layer == 0 else 12288
def frag(setb, name): return FR[setb] + 4 * ["wq", "wk", "wv", "xa", "xb", "xh"].index(name)
def nx_of(layer, w):
    if layer == 0: return 2 if w < 5 else 0
    return 2 if w < 4 else 1

def x_dma(layer, c, w):
    slot = c & 3; G = []
    if layer == 0:
        if w < 5:
            for v in range(2):
                g = [f"s_add_u32 m0, s40, {slot*XS(0) + v*1024}", f"s_mov_b32 s44, {c*128}"]
                if w == 0 and v == 0:
                    g += ["s_mov_b64 exec, s[46:47]", f"buffer_load_dwordx4 v{V_XOFF0}, s[12:15], s44 offen lds", "s_mov_b64 exec, -1"]
                else:
                    g += [f"buffer_load_dwordx4 v{V_XOFF0+v}, s[12:15], s44 offen lds"]
                G.append(g)
    else:
        for v in range(nx_of(1, w)):
            n = w + 8*v
            G.append([f"s_mov_b32 m0, {slot*XS(1) + n*1024}", f"s_mov_b32 s44, {c*64*4096}",
                      f"buffer_load_dwordx4 v{V_XOFF0+v}, s[12:15], s44 offen sc1 lds"])
    return G
def w_dma(c):
    slot = c & 3
    return [[f"s_add_u32 m0, s41, {slot*WS_ + q*8192}", f"s_add_u32 s45, s42, {c*64*3072 + q*1024}",
             f"buffer_load_dwordx4 v{V_WOFF}, s[16:19], s45 offen lds"] for q in range(3)]

def read_list(layer, c, ks, setb, rp, need_xh):
    if EXPERIMENT in ("noreads", "dmaonly"): return []
    slot = c & 3; G = []
    wa = V_WA0 if slot < 2 else V_WA1
    wimm = (slot & 1) * WS_ + ks * 4096
    tiles = [("xa", 1 + 2*rp), ("xb", 2 + 2*rp)] + ([("xh", 0)] if need_xh else [])
    def xr(nm, t):
        r = frag(setb, nm)
        if layer == 0:
            return [[f"ds_read_b128 v[{r}:{r+3}], v{V_XA0+ks} offset:{slot*XS(0) + t*2048}"]]
        o = slot*XS(1) + ks*6144 + t*32
        return [[f"ds_read_b64_tr_b16 v[{r}:{r+1}], v{V_XA0} offset:{o}"],
                [f"ds_read_b64_tr_b16 v[{r+2}:{r+3}], v{V_XA0} offset:{o + 768}"]]
    def wr(q, nm):
        r = frag(setb, nm)
        return [[f"ds_read_b64_tr_b16 v[{r}:{r+1}], v{wa} offset:{wimm + q*8192}"],
                [f"ds_read_b64_tr_b16 v[{r+2}:{r+3}], v{wa} offset:{wimm + q*8192 + 512}"]]
    G += wr(0, "wq"); G += xr(*tiles[0]); G += wr(1, "wk"); G += wr(2, "wv")
    for t in tiles[1:]: G += xr(*t)
    return G

def mf(d, x, y):
    return f"v_mfma_f32_16x16x32_bf16 v[{d}:{d+3}], v[{x}:{x+3}], v[{y}:{y+3}], v[{d}:{d+3}]"
def mfma_list(layer, setb, rp, h):
    if EXPERIMENT in ("nomfma", "dmaonly"): return ["s_nop 0"] * 7
    f = lambda n: frag(setb, n)
    A = ACC
    L = [mf(A["Qa"], f("wq"), f("xa")), mf(A["Ka"], f("wk"), f("xa")), mf(A["Va"], f("xa"), f("wv"))]
    st = f("xb") if (h & 1) else f("xa")
    stm = mf(A["ST"], st, st) if (h >> 1) else mf(A["ST"], ONES, st)
    if not (h & 1): L.append(stm)
    L += [mf(A["Qb"], f("wq"), f("xb")), mf(A["Kb"], f("wk"), f("xb")), mf(A["Vb"], f("xb"), f("wv"))]
    if h & 1: L.append(stm)
    if rp == 0:
        if layer == 0: L.append(mf(A["Qh"], f("wq"), f("xh")))
        L += [mf(A["Kh"], f("wk"), f("xh")), mf(A["Vh"], f("xh"), f("wv"))]
    elif h == 0: L.append(mf(A["HS"], ONES, f("xh")))
    elif h == 1: L.append(mf(A["HS"], f("xh"), f("xh")))
    return L

def interleave(a, M, O, per=2):
    k = 0
    for m in M:
        a(m)
        for _ in range(per):
            if k < len(O):
                for x in O[k]: a(x)
                k += 1
    while k < len(O):
        for x in O[k]: a(x)
        k += 1

class VmQ:
    def __init__(self): self.q = []
    def add(self, groups, chunk):
        for _ in groups: self.q.append(chunk)
        return groups
    def allowed_for(self, chunk):
        last = max((i for i, c in enumerate(self.q) if c == chunk), default=-1)
        return len(self.q) - 1 - last

def emit_prologue_dma(a, layer, P):
    for c in range(2):
        if layer == 0:
            a(f"s_cmp_gt_u32 s{S_W}, 4")
            a(f"s_cbranch_scc1 {P}_PX{c}")
            for v in range(2):
                a(f"s_add_u32 m0, s40, {c*XS(0) + v*1024}")
                a(f"s_mov_b32 s44, {c*128}")
                if v == 0:
                    a(f"s_cmp_eq_u32 s{S_W}, 0")
                    a("s_cselect_b32 s45, s46, -1")
                    a("s_mov_b32 exec_lo, s45")
                a(f"buffer_load_dwordx4 v{V_XOFF0+v}, s[12:15], s44 offen lds")
                if v == 0: a("s_mov_b32 exec_lo, -1")
            a.label(f"{P}_PX{c}")
            for g in w_dma(c):
                for x in g: a(x)
        else:
            a(f"s_add_u32 m0, s41, {c*XS(1) - WBASE}")
            a(f"s_mov_b32 s44, {c*64*4096}")
            a(f"buffer_load_dwordx4 v{V_XOFF0}, s[12:15], s44 offen sc1 lds")
            a(f"s_cmp_gt_u32 s{S_W}, 3")
            a(f"s_cbranch_scc1 {P}_PX{c}")
            a(f"s_add_u32 m0, s41, {c*XS(1) + 8192 - WBASE}")
            a(f"buffer_load_dwordx4 v{V_XOFF1}, s[12:15], s44 offen sc1 lds")
            a.label(f"{P}_PX{c}")

def emit_mainloop(a, layer, rp, h, ST):
    w = rp * 4 + h
    need_xh = (rp == 0) or (h < 2)
    Q = VmQ()
    for c in range(2):
        Q.add(x_dma(layer, c, w), c)
        if layer == 0: Q.add(w_dma(c), c)
    a(f"s_waitcnt vmcnt({Q.allowed_for(0)}) lgkmcnt(0)")
    a("s_barrier")
    ST(a, f"a1l{layer}_first")
    a.auto_on()
    for g in read_list(layer, 0, 0, 0, rp, need_xh):
        for x in g: a(x)
    nodma = EXPERIMENT == "nodma"
    for c in range(8):
        G = read_list(layer, c, 1, 1, rp, need_xh)
        if c == 0 and not nodma:
            if layer == 0:
                G = G + Q.add(x_dma(0, 2, w) + w_dma(2), 2) + Q.add(x_dma(0, 3, w) + w_dma(3), 3)
            else:
                G = G + Q.add(x_dma(1, 2, w), 2) + Q.add(x_dma(1, 3, w) + w_dma(3), 3)
        interleave(a, mfma_list(layer, 0, rp, h), G)
        if c < 7:
            if nodma: a("s_waitcnt lgkmcnt(0)")
            else: a(f"s_waitcnt vmcnt({Q.allowed_for(c + 1)}) lgkmcnt(0)")
            a("s_barrier")
            G = read_list(layer, c + 1, 0, 0, rp, need_xh)
            if c + 4 <= 7 and not nodma: G = G + Q.add(x_dma(layer, c + 4, w) + w_dma(c + 4), c + 4)
            interleave(a, mfma_list(layer, 1, rp, h), G)
        else:
            interleave(a, mfma_list(layer, 1, rp, h), [])
    a.auto_off()

def emit_stat_writes(a, layer, rp, h):
    A = ACC
    ts = 1 + 2*rp + (h & 1)
    def put(acc, tile, typ):
        o = tile*128 + typ*64
        if typ == 0:
            a("s_mov_b64 exec, 0xffff")
            a(f"ds_write_b32 v{V_STA}, v{acc} offset:{o}")
            a("s_mov_b64 exec, -1")
        else:
            a(f"v_cndmask_b32 v12, v{acc}, v{acc+1}, s[48:49]")
            a(f"v_cndmask_b32 v13, v{acc+2}, v{acc+3}, s[48:49]")
            a(f"v_cndmask_b32 v12, v12, v13, s[50:51]")
            a("s_mov_b64 exec, s[52:53]")
            a(f"ds_write_b32 v{V_STA}, v12 offset:{o}")
            a("s_mov_b64 exec, -1")
    put(A["ST"], ts, h >> 1)
    if rp == 1 and h < 2: put(A["HS"], 0, h)
    if rp == 0 and layer == 0:
        a("s_mov_b64 exec, s[54:55]")
        a(f"ds_write_b128 v{V_CSA}, v[{A['Qh']}:{A['Qh']+3}]")
        a(f"ds_write_b128 v{V_CSA}, v[{A['Kh']}:{A['Kh']+3}] offset:64")
        a("s_mov_b64 exec, 0xffff")
        a(f"ds_write_b32 v{V_CSB}, v{A['Vh']}")
        a("s_mov_b64 exec, -1")

def zipl(*lists):
    out = []; n = max(len(l) for l in lists)
    for i in range(n):
        for l in lists:
            if i < len(l): out.append(l[i])
    return out

def emit_epilogue(a, layer, rp, P, extra=None):
    A = ACC
    tiles = [("a", 1 + 2*rp), ("b", 2 + 2*rp)] + ([("h", 0)] if rp == 0 else [])
    base = 64
    NM = {}; RS = {}; NM4 = {}; RS4 = {}
    for i, (t, _) in enumerate(tiles):
        NM[t] = base + 12*i; RS[t] = base + 12*i + 1
        NM4[t] = base + 12*i + 4; RS4[t] = base + 12*i + 8
    CQ, CK, CV = V_CS, V_CS + 4, V_CS + 8
    a.auto_on()
    for (t, ti) in tiles:
        a(f"ds_read_b32 v{NM[t]}, v{V_STA} offset:{ti*128}")
        a(f"ds_read_b32 v{RS[t]}, v{V_STA} offset:{ti*128+64}")
    if layer == 0:
        a(f"ds_read_b128 v[{CQ}:{CQ+3}], v{V_CSA}")
        a(f"ds_read_b128 v[{CK}:{CK+3}], v{V_CSA} offset:64")
        a(f"ds_read_b32 v{CV}, v{V_CSB}")
    for g in (extra or []):
        for x in g: a(x)
    Ls = []
    for i, (t, ti) in enumerate(tiles):
        m, s = NM[t], RS[t]
        Ls.append([f"v_mul_f32 v{m}, s62, v{m}",
                   f"v_fma_f32 v{s}, v{s}, s63, v{V_EPS}",
                   f"v_fma_f32 v{s}, -v{m}, v{m}, v{s}",
                   f"v_max_f32 v{s}, v{V_EPS}, v{s}",
                   f"v_rsq_f32 v{s}, v{s}"])
    for x in zipl(*Ls): a(x)
    a("s_mov_b64 exec, 0xffff")
    for i, (t, ti) in enumerate(tiles):
        a(f"ds_write_b32 v{V_SCW}, v{NM[t]} offset:{i*128}")
        a(f"ds_write_b32 v{V_SCW}, v{RS[t]} offset:{i*128+64}")
    a("s_mov_b64 exec, -1")
    a("s_waitcnt lgkmcnt(0)")
    for i, (t, ti) in enumerate(tiles):
        a(f"ds_read_b128 v[{NM4[t]}:{NM4[t]+3}], v{V_SCR} offset:{i*128}")
        a(f"ds_read_b128 v[{RS4[t]}:{RS4[t]+3}], v{V_SCR} offset:{i*128+64}")
    QP = {"a": 112, "b": 114}; KP = {"a": 116, "b": 118, "h": 120}; VP = {"a": 122, "b": 124, "h": 126}
    def corr_rowlane(acc, cs, t, dst, scale):
        nm = NM[t]; L = []
        for p in range(2):
            L.append(f"v_pk_fma_f32 v[{acc+2*p}:{acc+2*p+1}], v[{nm}:{nm+1}], v[{cs+2*p}:{cs+2*p+1}], v[{acc+2*p}:{acc+2*p+1}] op_sel:[0,0,0] op_sel_hi:[0,1,1]")
        if scale:
            for p in range(2):
                L.append(f"v_pk_mul_f32 v[{acc+2*p}:{acc+2*p+1}], v[{nm}:{nm+1}], v[{acc+2*p}:{acc+2*p+1}] op_sel:[1,0] op_sel_hi:[1,1]")
        for p in range(2):
            L.append(f"v_cvt_pk_bf16_f32 v{dst+p}, v{acc+2*p}, v{acc+2*p+1}")
        return L
    Ls = [corr_rowlane(A["K"+t], CK, t, KP[t], True) for (t, _) in tiles] + [corr_rowlane(A["Q"+t], CQ, t, QP[t], False) for t in ("a", "b")]
    for x in zipl(*Ls): a(x)
    R = {"a": dict(SC=132, SP=136, T=140, PK=146, O=152, L=156, RC=160, OUT=162),
         "b": dict(SC=192, SP=196, T=200, PK=206, O=212, L=216, RC=220, OUT=222)}
    SQ = {"a": 12, "b": 13}
    a(f"v_mul_f32 v12, s61, v{RS['a']}")
    a(f"v_mul_f32 v13, s61, v{RS['b']}")
    prevs = {"a": "h", "b": "a"}
    def smm(t, which):
        r = R[t]; q = QP[t]
        k = KP[t] if which == "SC" else KP[prevs[t]]
        return f"v_mfma_f32_16x16x16_bf16 v[{r[which]}:{r[which]+3}], v[{k}:{k+1}], v[{q}:{q+1}], 0"
    a(smm("a", "SC")); a(smm("b", "SC")); a(smm("b", "SP"))
    if rp == 0: a(smm("a", "SP"))
    Ls = []
    for (t, _) in tiles:
        acc = A["V"+t]; L = []
        for p in range(2):
            L.append(f"v_pk_fma_f32 v[{acc+2*p}:{acc+2*p+1}], v[{NM4[t]+2*p}:{NM4[t]+2*p+1}], v[{CV}:{CV+1}], v[{acc+2*p}:{acc+2*p+1}] op_sel:[0,0,0] op_sel_hi:[1,0,1]")
        for p in range(2):
            L.append(f"v_pk_mul_f32 v[{acc+2*p}:{acc+2*p+1}], v[{RS4[t]+2*p}:{RS4[t]+2*p+1}], v[{acc+2*p}:{acc+2*p+1}]")
        for p in range(2):
            L.append(f"v_cvt_pk_bf16_f32 v{VP[t]+p}, v{acc+2*p}, v{acc+2*p+1}")
        Ls.append(L)
    for x in zipl(*Ls): a(x)
    if rp == 0:
        a(f"ds_write_b64 v{V_KVA}, v[{KP['b']}:{KP['b']+1}]")
        a(f"ds_write_b64 v{V_KVA}, v[{VP['b']}:{VP['b']+1}] offset:512")
        a("s_waitcnt lgkmcnt(0)")
        a("s_barrier")
        a.auto_off()
        lab = f"{P}_NOTFIRST"
        a(f"s_cmp_lg_u32 s{S_RB}, 0")
        a(f"s_cbranch_scc1 {lab}")
        a.fence(2)
        for r in range(4): a(f"v_mov_b32 v{R['a']['SP']+r}, 0xf149f2ca")
        a.label(lab)
        a.auto_on()
    else:
        a("s_barrier")
        a(f"ds_read_b64 v[{KP['h']}:{KP['h']+1}], v{V_KVA}")
        a(f"ds_read_b64 v[{VP['h']}:{VP['h']+1}], v{V_KVA} offset:512")
        a(smm("a", "SP"))
    def soft(t):
        r = R[t]; SC, SP, T, PK, O, L, RC, OUT = (r[k] for k in ("SC", "SP", "T", "PK", "O", "L", "RC", "OUT"))
        vc, vp = VP[t], VP[prevs[t]]
        ti = dict(tiles)[t]
        return [
            f"v_cndmask_b32 v{T+1}, v{SC}, v{SC+1}, s[48:49]",
            f"v_cndmask_b32 v{T+2}, v{SP}, v{SP+1}, s[48:49]",
            f"v_cndmask_b32 v{T+3}, v{SC+2}, v{SC+3}, s[48:49]",
            f"v_cndmask_b32 v{T+4}, v{SP+2}, v{SP+3}, s[48:49]",
            f"v_cndmask_b32 v{T+1}, v{T+2}, v{T+1}, s[56:57]",
            f"v_cndmask_b32 v{T+2}, v{T+4}, v{T+3}, s[58:59]",
            f"v_mul_f32 v{T+1}, v{T+1}, v{SQ[t]}",
            f"v_mul_f32 v{T+2}, v{T+2}, v{SQ[t]}",
            f"v_max_f32 v{T+3}, v{T+1}, v{T+2}",
            f"v_mov_b32 v{T+4}, v{T+3}",
            f"v_permlane16_swap_b32 v{T+3}, v{T+4}",
            f"v_max_f32 v{T+3}, v{T+3}, v{T+4}",
            f"v_mov_b32 v{T+4}, v{T+3}",
            f"v_permlane32_swap_b32 v{T+3}, v{T+4}",
            f"v_max_f32 v{T+3}, v{T+3}, v{T+4}",
            f"v_sub_f32 v{T+1}, v{T+1}, v{T+3}",
            f"v_sub_f32 v{T+2}, v{T+2}, v{T+3}",
            f"v_exp_f32 v{T+1}, v{T+1}",
            f"v_exp_f32 v{T+2}, v{T+2}",
            f"v_cvt_pk_bf16_f32 v{T+1}, v{T+1}, v{T+1}",
            f"v_cvt_pk_bf16_f32 v{T+2}, v{T+2}, v{T+2}",
            f"v_and_b32 v{PK}, v{T+1}, v{V_MK}",
            f"v_and_b32 v{PK+1}, v{T+2}, v{V_MK+2}",
            f"v_and_b32 v{PK+2}, v{T+1}, v{V_MK+1}",
            f"v_and_b32 v{PK+3}, v{T+2}, v{V_MK+3}",
            f"v_mfma_f32_16x16x16_bf16 v[{O}:{O+3}], v[{vc}:{vc+1}], v[{PK}:{PK+1}], 0",
            f"v_mfma_f32_16x16x16_bf16 v[{L}:{L+3}], v[{ONES}:{ONES+1}], v[{PK}:{PK+1}], 0",
            f"v_mfma_f32_16x16x16_bf16 v[{O}:{O+3}], v[{vp}:{vp+1}], v[{PK+2}:{PK+3}], v[{O}:{O+3}]",
            f"v_mfma_f32_16x16x16_bf16 v[{L}:{L+3}], v[{ONES}:{ONES+1}], v[{PK+2}:{PK+3}], v[{L}:{L+3}]",
            f"v_rcp_f32 v{RC}, v{L}",
            f"v_pk_mul_f32 v[{O}:{O+1}], v[{RC}:{RC+1}], v[{O}:{O+1}] op_sel:[0,0] op_sel_hi:[0,1]",
            f"v_pk_mul_f32 v[{O+2}:{O+3}], v[{RC}:{RC+1}], v[{O+2}:{O+3}] op_sel:[0,0] op_sel_hi:[0,1]",
            f"v_cvt_pk_bf16_f32 v{OUT}, v{O}, v{O+1}",
            f"v_cvt_pk_bf16_f32 v{OUT+1}, v{O+2}, v{O+3}",
            f"buffer_store_dwordx2 v[{OUT}:{OUT+1}], v{V_OA}, s[20:23], s{36 + (ti - 1 - 2*rp)} offen sc1",
        ]
    La, Lb = soft("a"), soft("b")
    for x in Lb[:6]: a(x)
    for x in zipl(La, Lb[6:]): a(x)
    a.auto_off()

def emit_setup_dma(a, layer):
    a(f"v_lshrrev_b32 v11, 3, v{V_LANE}")
    a("v_mul_u32_u24 v14, 3072, v11")
    a(f"v_and_b32 v15, 1, v{V_G}")
    a(f"s_and_b32 s35, s{S_W}, 1")
    a("s_lshl_b32 s35, s35, 1")
    a("v_or_b32 v15, s35, v15")
    a(f"v_lshrrev_b32 v13, 1, v{V_LANE}")
    a("v_and_b32 v13, 3, v13")
    a("v_xor_b32 v13, v13, v15")
    a("v_lshlrev_b32 v13, 5, v13")
    a("v_add_u32 v14, v14, v13")
    a(f"v_and_b32 v13, 1, v{V_LANE}")
    a("v_lshlrev_b32 v13, 4, v13")
    a("v_add_u32 v14, v14, v13")
    a(f"s_lshl_b32 s35, s{S_HG}, 7")
    a(f"v_add_u32 v{V_WOFF}, s35, v14")
    if layer == 0:
        a(f"s_lshl_b32 s35, s{S_RB}, 6")
        a(f"s_lshl_b32 s36, s{S_W}, 4")
        a("s_add_u32 s35, s35, s36")
        a("s_sub_u32 s35, s35, 16")
        a("v_add_u32 v11, s35, v11")
        a("v_lshlrev_b32 v11, 10, v11")
        a(f"v_and_b32 v13, 7, v{V_LANE}")
        a(f"v_xor_b32 v14, v13, v{V_G}")
        a("v_lshlrev_b32 v14, 4, v14")
        a(f"v_add_u32 v{V_XOFF0}, v11, v14")
        a("v_xor_b32 v14, 64, v14")
        a("v_add_u32 v11, 8192, v11")
        a(f"v_add_u32 v{V_XOFF1}, v11, v14")
        a("s_mov_b32 s46, 0xffffff00"); a("s_mov_b32 s47, -1")
    else:
        a(f"s_lshl_b32 s35, s{S_RB}, 7")
        a("s_sub_u32 s35, s35, 32")
        a(f"s_lshl_b32 s36, s{S_W}, 6")
        for v in range(2):
            a(f"v_add_u32 v11, s36, v{V_LANE}")
            if v: a("v_add_u32 v11, 512, v11")
            a("v_mul_u32_u24 v12, 5462, v11")
            a("v_lshrrev_b32 v12, 16, v12")
            a("v_mul_u32_u24 v13, 12, v12")
            a("v_sub_u32 v13, v11, v13")
            a("v_lshrrev_b32 v14, 2, v12")
            a("v_and_b32 v14, 2, v14")
            a("v_sub_u32 v13, v13, v14")
            a("v_med3_i32 v13, v13, 0, 9")
            a("v_lshlrev_b32 v13, 4, v13")
            a("v_lshlrev_b32 v12, 12, v12")
            a("v_add_u32 v12, v12, v13")
            a(f"v_add_u32 v{V_XOFF0+v}, s35, v12")
    a(f"s_lshl_b32 s40, s{S_W}, 11")
    a(f"s_lshl_b32 s41, s{S_W}, 10")
    a(f"s_add_u32 s41, s41, {WBASE}")
    a(f"s_mul_i32 s42, s{S_W}, {8*3072}")

def emit_setup_rest(a, layer, P):
    if layer == 0:
        a(f"v_lshrrev_b32 v11, 1, v{V_J}")
        a(f"v_xor_b32 v11, v11, v{V_G}")
        a("v_lshlrev_b32 v11, 4, v11")
        a(f"v_lshlrev_b32 v12, 7, v{V_J}")
        a(f"v_add_u32 v{V_XA0}, v11, v12")
        a(f"v_xor_b32 v{V_XA1}, 64, v{V_XA0}")
    a(f"v_lshrrev_b32 v11, 2, v{V_J}")
    a(f"v_lshlrev_b32 v12, 3, v{V_G}")
    a("v_add_u32 v12, v12, v11")
    a(f"v_and_b32 v14, 3, v{V_LANE}")
    a("v_lshlrev_b32 v14, 3, v14")
    a(f"v_and_b32 v13, 1, v{V_G}")
    if layer == 1:
        a("v_mul_u32_u24 v15, 192, v12")
        a("v_lshlrev_b32 v16, 5, v13")
        a("v_add_u32 v15, v15, v16")
        a(f"v_add_u32 v{V_XA0}, v15, v14")
    a("v_lshlrev_b32 v12, 7, v12")
    a("v_lshrrev_b32 v11, 1, v11")
    a("v_lshlrev_b32 v13, 1, v13")
    a("v_or_b32 v11, v11, v13")
    a(f"v_xor_b32 v11, s{S_H}, v11")
    a("v_lshlrev_b32 v11, 5, v11")
    a("v_add_u32 v12, v12, v11")
    a("v_add_u32 v12, v12, v14")
    a(f"v_add_u32 v{V_WA0}, {WBASE}, v12")
    a(f"v_add_u32 v{V_WA1}, {WBASE + 2*WS_}, v12")
    a(f"v_and_b32 v11, 1, v{V_J}")
    a("v_cmp_eq_u32 s[48:49], 1, v11")
    a(f"v_and_b32 v12, 2, v{V_J}")
    a("v_cmp_eq_u32 s[50:51], 2, v12")
    a(f"v_lshrrev_b32 v12, 2, v{V_J}")
    a(f"v_cmp_eq_u32 s[52:53], v12, v{V_G}")
    a(f"v_cmp_eq_u32 s[54:55], 0, v{V_J}")
    a(f"v_lshlrev_b32 v13, 2, v{V_G}")
    a("v_add_u32 v13, v13, v11")
    a(f"v_cmp_le_u32 s[56:57], v13, v{V_J}")
    a("v_add_u32 v13, 2, v13")
    a(f"v_cmp_le_u32 s[58:59], v13, v{V_J}")
    a("v_mov_b32 v16, 0xffff")
    a("v_mov_b32 v17, 0xffff0000")
    a("v_cndmask_b32 v16, v16, v17, s[48:49]")
    a("v_mov_b32 v17, 0")
    a(f"v_cndmask_b32 v{V_MK}, v17, v16, s[56:57]")
    a(f"v_cndmask_b32 v{V_MK+1}, v16, v17, s[56:57]")
    a(f"v_cndmask_b32 v{V_MK+2}, v17, v16, s[58:59]")
    a(f"v_cndmask_b32 v{V_MK+3}, v16, v17, s[58:59]")
    a(f"v_lshlrev_b32 v11, 2, v{V_J}")
    a(f"v_lshlrev_b32 v12, 4, v{V_G}")
    a(f"v_add_u32 v{V_STA}, {STAT}, v11")
    a(f"s_mul_i32 s35, s{S_W}, 384")
    a(f"s_add_u32 s35, s35, {SCR}")
    a(f"v_add_u32 v{V_SCW}, s35, v11")
    a(f"v_add_u32 v{V_SCR}, s35, v12")
    a(f"s_mul_i32 s35, s{S_H}, 192")
    a(f"s_add_u32 s35, s35, {CSL}")
    a(f"v_add_u32 v{V_CSA}, s35, v12")
    a("s_add_u32 s35, s35, 128")
    a(f"v_add_u32 v{V_CSB}, s35, v11")
    a(f"s_lshl_b32 s35, s{S_H}, 10")
    a(f"s_add_u32 s35, s35, {KV}")
    a(f"v_lshlrev_b32 v13, 3, v{V_LANE}")
    a(f"v_add_u32 v{V_KVA}, s35, v13")
    a(f"v_lshlrev_b32 v13, 10, v{V_J}")
    a(f"v_lshlrev_b32 v14, 3, v{V_G}")
    a(f"v_add_u32 v{V_OA}, v13, v14")
    a(f"s_lshl_b32 s35, s{S_HG}, 2"); a(f"s_add_u32 s35, s35, s{S_H}"); a("s_lshl_b32 s35, s35, 5")
    a(f"s_lshl_b32 s36, s{S_RB}, 16")
    a("s_add_u32 s36, s36, s35")
    a(f"s_lshl_b32 s35, s{S_RP}, 15")
    a("s_add_u32 s36, s36, s35")
    a("s_add_u32 s37, s36, 16384")
    a("s_mov_b32 s61, 0x3eb8aa3b")
    a("s_mov_b32 s62, 0xbb000000")
    a("s_mov_b32 s63, 0x3b000000")
    a(f"v_mov_b32 v{V_EPS}, 0x3727c5ac")
    for i in range(4): a(f"v_mov_b32 v{ONES+i}, 0x3f803f80")
    for i in range(24, 64): a(f"v_mov_b32 v{i}, 0")
    srd(a, 20, S_WS, size=0x200000, off=WS_O[layer])
    if layer == 0:
        a(f"s_cmp_lg_u32 s{S_W}, 0")
        a(f"s_cbranch_scc1 {P}_NOONES")
        a(f"v_lshlrev_b32 v11, 4, v{V_LANE}")
        a("s_mov_b64 exec, 0xff")
        for s in range(4): a(f"ds_write_b128 v11, v[{ONES}:{ONES+3}] offset:{s*XS(0)}")
        a("s_mov_b64 exec, -1")
        a.label(f"{P}_NOONES")

def emit_body(a, layer, P, ST, extra_ep):
    for w in range(1, 8):
        a(f"s_cmp_eq_u32 s{S_W}, {w}")
        a(f"s_cbranch_scc1 {P}_V{w}")
    for w in range(8):
        rp, h = w >> 2, w & 3
        a.label(f"{P}_V{w}")
        emit_mainloop(a, layer, rp, h, ST)
        ST(a, f"a1l{layer}_loop_end")
        a.fence(8)
        emit_stat_writes(a, layer, rp, h)
        a("s_waitcnt lgkmcnt(0)")
        a("s_barrier")
        a(f"s_branch {P}_EP{rp}")
    for rp in range(2):
        a.label(f"{P}_EP{rp}")
        emit_epilogue(a, layer, rp, P + f"_R{rp}", extra_ep)
        a(f"s_branch {P}_DONE")
    a.label(f"{P}_DONE")
```

```python
from pk_common import *
V_WO0, V_WO1 = 224, 225
S_WOM, S_WOS = 76, 77
def emit_wo_setup(a):
    a(f"v_lshrrev_b32 v11, 3, v{V_LANE}")
    a("v_lshlrev_b32 v11, 10, v11")
    a(f"v_and_b32 v12, 1, v{V_G}")
    a(f"v_lshrrev_b32 v13, 1, v{V_LANE}")
    a("v_and_b32 v13, 3, v13")
    a("v_xor_b32 v13, v13, v12")
    a("v_lshlrev_b32 v13, 5, v13")
    a(f"v_and_b32 v14, 1, v{V_LANE}")
    a("v_lshlrev_b32 v14, 4, v14")
    a("v_add_u32 v11, v11, v14")
    a(f"s_lshl_b32 s35, s{S_HG}, 7")
    a("v_add_u32 v11, s35, v11")
    a(f"v_add_u32 v{V_WO0}, v11, v13")
    a("v_xor_b32 v13, 64, v13")
    a("v_add_u32 v11, 8192, v11")
    a(f"v_add_u32 v{V_WO1}, v11, v13")
    a(f"s_lshl_b32 s{S_WOM}, s{S_W}, 11")
    a(f"s_add_u32 s{S_WOM}, s{S_WOM}, {WOB}")
    a(f"s_lshl_b32 s{S_WOS}, s{S_W}, 14")
    srd(a, 24, S_WO, size=0x80000)
def wo_dma_groups():
    G = []
    for c in range(4):
        for v in range(2):
            G.append([f"s_add_u32 m0, s{S_WOM}, {c*128*128 + v*1024}", f"s_add_u32 s78, s{S_WOS}, {c*128*1024}",
                      f"buffer_load_dwordx4 v{V_WO0+v}, s[24:27], s78 offen lds"])
    return G

def emit_setup(a, layer):
    rt, chh = 79, 80
    a(f"s_and_b32 s{rt}, s{S_W}, 3")
    a(f"s_lshr_b32 s{chh}, s{S_W}, 2")
    a(f"s_lshl_b32 s81, s{S_RB}, 6")
    a(f"s_lshl_b32 s35, s{S_W}, 3")
    a(f"v_add_u32 v11, s35, v{V_G}")
    a("v_and_b32 v12, 15, v11")
    a(f"v_xor_b32 v12, v12, v{V_J}")
    a("v_lshlrev_b32 v12, 4, v12")
    a("v_add_u32 v13, s81, v11")
    a("v_lshlrev_b32 v13, 10, v13")
    a("v_add_u32 v4, v13, v12")
    a("v_xor_b32 v12, 64, v12")
    a("v_add_u32 v13, 4096, v13")
    a("v_add_u32 v5, v13, v12")
    a(f"s_lshl_b32 s40, s{S_W}, 11")
    srd(a, 12, S_WS, size=0x200000, off=WS_O[layer])
    a(f"s_lshl_b32 s35, s{rt}, 4")
    a("s_add_u32 s35, s35, s81")
    a(f"v_lshlrev_b32 v11, 2, v{V_G}")
    a("v_add_u32 v11, s35, v11")
    a(f"s_lshl_b32 s36, s{S_HG}, 6")
    a(f"s_lshl_b32 s37, s{chh}, 5")
    a("s_add_u32 s36, s36, s37")
    a(f"v_add_u32 v13, s36, v{V_J}")
    if layer == 0:
        srd(a, 20, S_X0, size=0x200000)
        a("v_lshlrev_b32 v12, 10, v11")
        a("v_lshlrev_b32 v14, 1, v13")
        a("v_add_u32 v8, v12, v14")
        for t in range(2):
            for r in range(4):
                a(f"buffer_load_short_d16_hi v{56+4*t+r}, v8, s[20:23], 0 offen offset:{32*t+1024*r}")
    else:
        srd(a, 20, S_WS, size=0x200000, off=WS_X2T)
        a("v_lshlrev_b32 v12, 12, v13")
        a("v_lshlrev_b32 v14, 1, v11")
        a("v_add_u32 v8, v12, v14")
        a("s_mov_b32 s44, 65536")
        a("buffer_load_dwordx2 v[64:65], v8, s[20:23], 0 offen sc1")
        a("buffer_load_dwordx2 v[66:67], v8, s[20:23], s44 offen sc1")
    a("v_lshlrev_b32 v14, 12, v13")
    a("v_lshlrev_b32 v15, 1, v11")
    a("v_add_u32 v9, v14, v15")
    a(f"s_lshl_b32 s35, s{rt}, 4")
    a(f"v_add_u32 v11, s35, v{V_J}")
    a("v_lshlrev_b32 v11, 8, v11")
    for m in range(4):
        a(f"v_add_u32 v12, {4*m}, v{V_G}")
        a(f"v_xor_b32 v12, v12, v{V_J}")
        a("v_lshlrev_b32 v12, 4, v12")
        a(f"v_add_u32 v{16+m}, v11, v12")
    a(f"v_lshrrev_b32 v11, 2, v{V_J}")
    a(f"v_lshlrev_b32 v12, 3, v{V_G}")
    a("v_add_u32 v12, v12, v11")
    a("v_lshlrev_b32 v12, 7, v12")
    a("v_lshrrev_b32 v11, 1, v11")
    a(f"v_and_b32 v13, 1, v{V_G}")
    a("v_lshlrev_b32 v13, 1, v13")
    a("v_or_b32 v11, v11, v13")
    a(f"s_lshl_b32 s35, s{chh}, 1")
    a("v_xor_b32 v11, s35, v11")
    a("v_lshlrev_b32 v13, 5, v11")
    a(f"v_and_b32 v14, 3, v{V_LANE}")
    a("v_lshlrev_b32 v14, 3, v14")
    a("v_add_u32 v12, v12, v14")
    a(f"v_add_u32 v12, {WOB}, v12")
    a("v_add_u32 v20, v12, v13")
    a("v_xor_b32 v13, 32, v13")
    a("v_add_u32 v21, v12, v13")
    for i in range(24, 32): a(f"v_mov_b32 v{i}, 0")

def emit_body(a, layer, P, ST):
    rt, chh = 79, 80
    for c in range(4):
        for v in range(2):
            a(f"s_add_u32 m0, s40, {OCH[c] + v*1024}")
            a(f"s_mov_b32 s44, {c*256}")
            a(f"buffer_load_dwordx4 v{4+v}, s[12:15], s44 offen sc1 lds")
    FR = [32, 44]
    def reads(s, st):
        b = FR[st]
        L = [f"ds_read_b128 v[{b}:{b+3}], v{16 + (s & 3)} offset:{OCH[s >> 2]}" if OCH[s >> 2] < 65536 else None]
        if L[0] is None:
            L = [f"ds_read_b128 v[{b}:{b+3}], v{68 + (s & 3)}"]
        for t in range(2):
            L.append(f"ds_read_b64_tr_b16 v[{b+4+4*t}:{b+5+4*t}], v{20+t} offset:{s*4096}")
            L.append(f"ds_read_b64_tr_b16 v[{b+6+4*t}:{b+7+4*t}], v{20+t} offset:{s*4096+512}")
        return L
    def mm(st):
        b = FR[st]
        return [f"v_mfma_f32_16x16x32_bf16 v[24:27], v[{b}:{b+3}], v[{b+4}:{b+7}], v[24:27]",
                f"v_mfma_f32_16x16x32_bf16 v[28:31], v[{b}:{b+3}], v[{b+8}:{b+11}], v[28:31]"]
    for m in range(4): a(f"v_add_u32 v{68+m}, {OCH[3]}, v{16+m}")
    for c in range(4):
        a(f"s_waitcnt vmcnt({2*(3-c)})")
        a("s_barrier")
        if c == 0: ST(a, f"a2l{layer}_first")
        a.auto_on()
        for x in reads(4*c, 0): a(x)
        for m in range(4):
            s = 4*c + m
            rd = reads(s + 1, (m + 1) & 1) if m < 3 else []
            M = mm(m & 1)
            a(M[0])
            for x in rd[:3]: a(x)
            a(M[1])
            for x in rd[3:]: a(x)
        a.auto_off()
    ST(a, f"a2l{layer}_loop_end")
    srd(a, 12, S_WS, size=0x200000, off=(WS_X1T if layer == 0 else WS_X3T))
    srd(a, 16, S_WS, size=0x4000, off=(WS_STATS0 if layer == 0 else WS_STATS1))
    if layer == 1:
        for i in range(4):
            a(f"v_lshlrev_b32 v{56+2*i}, 16, v{64+i}")
            a(f"v_and_b32 v{57+2*i}, 0xffff0000, v{64+i}")
    for t in range(2):
        acc = 24 + 4*t
        a(f"v_pk_add_f32 v[{acc}:{acc+1}], v[{acc}:{acc+1}], v[{56+4*t}:{57+4*t}]")
        a(f"v_pk_add_f32 v[{acc+2}:{acc+3}], v[{acc+2}:{acc+3}], v[{58+4*t}:{59+4*t}]")
    for t in range(2):
        acc = 24 + 4*t
        a(f"v_cvt_pk_bf16_f32 v{70+2*t}, v{acc}, v{acc+1}")
        a(f"v_cvt_pk_bf16_f32 v{71+2*t}, v{acc+2}, v{acc+3}")
        a(f"s_mov_b32 s44, {t*16*4096}")
        a(f"buffer_store_dwordx2 v[{70+2*t}:{71+2*t}], v9, s[12:15], s44 offen sc1")
    a("v_pk_add_f32 v[76:77], v[24:25], v[28:29]")
    a("v_pk_add_f32 v[78:79], v[26:27], v[30:31]")
    a("v_pk_mul_f32 v[80:81], v[24:25], v[24:25]")
    a("v_pk_mul_f32 v[82:83], v[26:27], v[26:27]")
    a("v_pk_fma_f32 v[80:81], v[28:29], v[28:29], v[80:81]")
    a("v_pk_fma_f32 v[82:83], v[30:31], v[30:31], v[82:83]")
    for sh in (8, 4, 2, 1):
        for i in range(8):
            a(f"v_add_f32_dpp v{76+i}, v{76+i}, v{76+i} row_ror:{sh} row_mask:0xf bank_mask:0xf")
    a(f"s_lshl_b32 s44, s{chh}, 9")
    a(f"s_lshl_b32 s45, s{rt}, 6")
    a("s_add_u32 s44, s44, s45")
    a(f"s_add_u32 s44, s44, {LDS_TOTAL}")
    a(f"v_lshlrev_b32 v11, 4, v{V_G}")
    a("v_add_u32 v11, s44, v11")
    a(f"v_cmp_eq_u32 vcc, 0, v{V_J}")
    a("s_and_saveexec_b64 s[46:47], vcc")
    a("ds_write_b128 v11, v[76:79]")
    a("ds_write_b128 v11, v[80:83] offset:256")
    a("s_mov_b64 exec, s[46:47]")
    a("s_waitcnt lgkmcnt(0)")
    a("s_barrier")
    a(f"s_cmp_gt_u32 s{S_W}, 1")
    a(f"s_cbranch_scc1 {P}_NOAT")
    a(f"s_lshl_b32 s44, s{S_W}, 8")
    a(f"s_add_u32 s44, s44, {LDS_TOTAL}")
    a(f"v_lshlrev_b32 v11, 2, v{V_LANE}")
    a("v_add_u32 v12, s44, v11")
    a("ds_read_b32 v13, v12")
    a("ds_read_b32 v14, v12 offset:512")
    a(f"s_lshl_b32 s44, s{S_W}, 13")
    a("s_lshl_b32 s45, s81, 2")
    a("s_add_u32 s44, s44, s45")
    a("s_waitcnt lgkmcnt(0)")
    a("v_add_f32 v13, v13, v14")
    a("buffer_atomic_add_f32 v13, v11, s[16:19], s44 offen")
    a.label(f"{P}_NOAT")
```

```python
from pk_common import *
AF = [104, 186]
def emit_setup(a, layer):
    a(f"s_and_b32 s79, s{S_W}, 1")
    a(f"s_lshr_b32 s80, s{S_W}, 1")
    a("s_and_b32 s80, s80, 1")
    a("v_lshlrev_b32 v4, 3, v0")
    a("v_lshlrev_b32 v5, 4, v0")
    a(f"s_lshl_b32 s35, s{S_CP}, 13")
    a("s_add_u32 s36, s35, 4096")
    a("s_mov_b32 s37, 8192")
    srd(a, 12, S_WS, size=0x200000, off=(WS_X1T if layer == 0 else WS_X3T))
    srd(a, 16, S_WS, size=0x4000, off=(WS_STATS0 if layer == 0 else WS_STATS1))
    a("v_cmp_gt_u32 vcc, 64, v0")
    a("s_and_saveexec_b64 s[42:43], vcc")
    a("v_lshrrev_b32 v7, 5, v0")
    a(f"v_mul_u32_u24 v7, {UCH}, v7")
    a("v_and_b32 v8, 31, v0")
    a("v_lshlrev_b32 v8, 4, v8")
    a("v_add_u32 v7, v7, v8")
    for i in range(4): a(f"v_mov_b32 v{44+i}, 0")
    a(f"ds_write_b128 v7, v[44:47] offset:{UB}")
    a("s_mov_b64 exec, s[42:43]")
    a(f"v_and_b32 v11, 1, v{V_J}")
    a("s_lshl_b32 s46, s79, 1")
    a("v_add_u32 v11, s46, v11")
    a("v_mul_u32_u24 v11, 4160, v11")
    a(f"v_lshrrev_b32 v12, 1, v{V_J}")
    a(f"v_lshlrev_b32 v13, 2, v{V_G}")
    a("v_sub_u32 v13, v13, v12")
    a("s_lshl_b32 s46, s80, 6")
    a(f"s_sub_u32 s46, {1015 - 48}, s46")
    a("v_add_u32 v13, s46, v13")
    a("v_lshlrev_b32 v13, 2, v13")
    a("v_add_u32 v11, v11, v13")
    a(f"v_add_u32 v11, {KA}, v11")
    for s in range(8):
        a(f"v_subrev_u32 v{60+s}, {512*s}, v11")
    a(f"v_lshlrev_b32 v12, 5, v{V_J}")
    a(f"v_lshlrev_b32 v13, 4, v{V_G}")
    a("v_add_u32 v12, v12, v13")
    a(f"s_mul_i32 s46, s79, {UCH}")
    a("s_lshl_b32 s47, s80, 8")
    a("s_sub_u32 s46, s46, s47")
    a(f"s_add_u32 s46, s46, {UB}")
    a("v_add_u32 v68, s46, v12")
    for i in range(32): a(f"v_mov_b32 v{72+i}, 0")
    a("v_mov_b32 v36, 0x3b000000")
    a("v_mov_b32 v37, 0x3727c5ac")
    a(f"v_add_u32 v9, {XB}, v4")

def emit_body(a, layer, P, ST):
    a("buffer_load_dwordx4 v[28:31], v5, s[16:19], 0 offen sc1")
    a("buffer_load_dwordx4 v[32:35], v5, s[16:19], s37 offen sc1")
    a("buffer_load_dwordx2 v[20:21], v4, s[12:15], s35 offen sc1")
    a("buffer_load_dwordx2 v[22:23], v4, s[12:15], s36 offen sc1")
    a("s_waitcnt vmcnt(0)")
    ST(a, f"bl{layer}_loaded")
    for p in range(2):
        m, s = 28 + 2*p, 32 + 2*p
        a(f"v_pk_mul_f32 v[{m}:{m+1}], v[{m}:{m+1}], v[36:37] op_sel:[0,0] op_sel_hi:[1,0]")
        a(f"v_pk_fma_f32 v[{s}:{s+1}], v[{s}:{s+1}], v[36:37], v[36:37] op_sel:[0,0,1] op_sel_hi:[1,0,1]")
    for p in range(2):
        m, s = 28 + 2*p, 32 + 2*p
        a(f"v_pk_fma_f32 v[{s}:{s+1}], v[{m}:{m+1}], v[{m}:{m+1}], v[{s}:{s+1}] neg_lo:[1,0,0] neg_hi:[1,0,0]")
    for i in range(4): a(f"v_max_f32 v{32+i}, v37, v{32+i}")
    for i in range(4): a(f"v_rsq_f32 v{32+i}, v{32+i}")
    for p in range(2):
        a(f"v_pk_mul_f32 v[{40+2*p}:{41+2*p}], v[{28+2*p}:{29+2*p}], v[{32+2*p}:{33+2*p}]")
    for ch in range(2):
        for d in range(2):
            x = 20 + 2*ch + d; t = 48 + 4*ch + 2*d
            a(f"v_lshlrev_b32 v{t}, 16, v{x}")
            a(f"v_and_b32 v{t+1}, 0xffff0000, v{x}")
    for ch in range(2):
        for d in range(2):
            t = 48 + 4*ch + 2*d
            a(f"v_pk_fma_f32 v[{t}:{t+1}], v[{t}:{t+1}], v[{32+2*d}:{33+2*d}], v[{40+2*d}:{41+2*d}] neg_lo:[0,0,1] neg_hi:[0,0,1]")
    for ch in range(2):
        for d in range(2):
            t = 48 + 4*ch + 2*d
            a(f"v_cvt_pk_bf16_f32 v{56+2*ch+d}, v{t}, v{t+1}")
    for ch in range(2):
        a(f"ds_write_b64 v4, v[{56+2*ch}:{57+2*ch}] offset:{UB + ch*UCH + 512}")
        a(f"ds_write_b64 v9, v[{20+2*ch}:{21+2*ch}] offset:{ch*4096}")
    a("s_waitcnt lgkmcnt(0)")
    a("s_barrier")
    ST(a, f"bl{layer}_ln")
    a(f"s_cmp_gt_u32 s{S_W}, 3")
    a(f"s_cbranch_scc1 {P}_SKIPMM")
    def rd_list(rp, st):
        b = AF[st]; o = 16*(3 - rp); L = []
        def A(s):
            L.append(f"ds_read2_b32 v[{b+4*s}:{b+4*s+1}], v{60+s} offset0:{o} offset1:{o+1}")
            L.append(f"ds_read2_b32 v[{b+4*s+2}:{b+4*s+3}], v{60+s} offset0:{o+2} offset1:{o+3}")
        A(0)
        for tau in range(8):
            L.append(f"ds_read_b128 v[{b+32+4*tau}:{b+35+4*tau}], v68 offset:{480 + 512*tau - 64*rp}")
        for s in range(1, 8): A(s)
        return L
    def mm_list(st):
        b = AF[st]; L = []
        for s in range(8):
            for t in range(s, 8):
                tau = t - s
                L.append(f"v_mfma_f32_16x16x32_bf16 v[{72+4*t}:{75+4*t}], v[{b+4*s}:{b+4*s+3}], v[{b+32+4*tau}:{b+35+4*tau}], v[{72+4*t}:{75+4*t}]")
        return L
    a.auto_on()
    for ins in rd_list(0, 0): a(ins)
    for rp in range(4):
        mm = mm_list(rp & 1)
        rd = rd_list(rp + 1, (rp + 1) & 1) if rp < 3 else []
        k = 0
        for i, m in enumerate(mm):
            a(m)
            if i % 3 != 2 and k < len(rd): a(rd[k]); k += 1
    a.auto_off()
    ST(a, f"bl{layer}_mm")
    a(f"s_lshl_b32 s46, s{S_W}, 13")
    a(f"v_lshlrev_b32 v11, 4, v{V_LANE}")
    a("v_add_u32 v12, s46, v11")
    a.fence(6)
    for t in range(8): a(f"ds_write_b128 v12, v[{72+4*t}:{75+4*t}] offset:{RB + 1024*t}")
    a.label(f"{P}_SKIPMM")
    a("s_waitcnt lgkmcnt(0)")
    a("s_barrier")
    a(f"s_lshl_b32 s46, s{S_W}, 10")
    a(f"v_lshlrev_b32 v11, 4, v{V_LANE}")
    a("v_add_u32 v12, s46, v11")
    for wv in range(4): a(f"ds_read_b128 v[{104+4*wv}:{107+4*wv}], v12 offset:{RB + 8192*wv}")
    a(f"v_lshlrev_b32 v14, 5, v{V_J}")
    a(f"v_lshlrev_b32 v15, 3, v{V_G}")
    a("v_add_u32 v14, v14, v15")
    a(f"s_lshl_b32 s46, s{S_W}, 9")
    a("v_add_u32 v14, s46, v14")
    a(f"v_add_u32 v15, {XB}, v14")
    for ch in range(2):
        a(f"ds_read_b64 v[{120+2*ch}:{121+2*ch}], v14 offset:{UB + ch*UCH + 512}")
        a(f"ds_read_b64 v[{124+2*ch}:{125+2*ch}], v15 offset:{ch*4096}")
    a(f"s_lshl_b32 s48, s{S_DSK}, 16")
    a(f"s_and_b32 s49, s{S_DSK}, 0xffff0000")
    a("v_mov_b32 v136, s48")
    a("v_mov_b32 v137, s49")
    if layer == 0:
        srd(a, 12, S_WS, size=0x200000, off=WS_X2T)
        a(f"s_lshl_b32 s46, s{S_CP}, 13")
        a("s_add_u32 s47, s46, 4096")
    else:
        srd(a, 12, S_OUT, size=0x200000)
        a("v_lshlrev_b32 v5, 9, v14")
        a(f"s_lshl_b32 s46, s{S_CP}, 2")
    a("s_waitcnt lgkmcnt(0)")
    for ch in range(2):
        y = 104 + 4*ch
        for p in range(2):
            a(f"v_pk_add_f32 v[{y+2*p}:{y+2*p+1}], v[{y+2*p}:{y+2*p+1}], v[{y+8+2*p}:{y+8+2*p+1}]")
    for ch in range(2):
        for d in range(2):
            t = 140 + 8*ch + 2*d
            a(f"v_lshlrev_b32 v{t}, 16, v{120+2*ch+d}")
            a(f"v_and_b32 v{t+1}, 0xffff0000, v{120+2*ch+d}")
            a(f"v_lshlrev_b32 v{t+4}, 16, v{124+2*ch+d}")
            a(f"v_and_b32 v{t+5}, 0xffff0000, v{124+2*ch+d}")
    for ch in range(2):
        for d in range(2):
            y = 104 + 4*ch + 2*d; t = 140 + 8*ch + 2*d
            a(f"v_pk_fma_f32 v[{y}:{y+1}], v[{t}:{t+1}], v[136:137], v[{y}:{y+1}] op_sel:[0,{ch},0] op_sel_hi:[1,{ch},1]")
    for ch in range(2):
        for d in range(2):
            y = 104 + 4*ch + 2*d; t = 140 + 8*ch + 2*d
            a(f"v_pk_add_f32 v[{y}:{y+1}], v[{y}:{y+1}], v[{t+4}:{t+5}]")
    if layer == 0:
        for ch in range(2):
            a(f"v_cvt_pk_bf16_f32 v{160+2*ch}, v{104+4*ch}, v{105+4*ch}")
            a(f"v_cvt_pk_bf16_f32 v{161+2*ch}, v{106+4*ch}, v{107+4*ch}")
            a(f"buffer_store_dwordx2 v[{160+2*ch}:{161+2*ch}], v14, s[12:15], s{46+ch} offen sc1")
    else:
        for r in range(4):
            a(f"v_cvt_pk_bf16_f32 v{160+r}, v{104+r}, v{108+r}")
        for r in range(4):
            a(f"buffer_store_dword v{160+r}, v5, s[12:15], s46 offen offset:{r*1024}")
```

```python
from asmlib import *
WS_EPOCH  = 0x0
WS_STATS0 = 0x4000
WS_STATS1 = 0x8000
WS_FL     = 0x10000
FL_H1 = [0x00000, 0x18000]
FL_H2 = [0x08000, 0x20000]
FL_H3 = 0x10000
FL_SIZE = 0x28000
WS_KT     = 0x100000
KT_CH     = 8320
KT_PAR    = 4160
WS_O      = [0x600000, 0x800000]
WS_X1T    = 0xA00000
WS_X2T    = 0xC00000
WS_X3T    = 0xE00000
WS_STAMP  = 0x8000000
KA_X, KA_WQKV, KA_WO, KA_U, KA_LOGA, KA_AIM, KA_CR, KA_CI, KA_LOGDT, KA_DSKIP, KA_OUT, KA_DBG, KA_WS = [8*i for i in range(13)]

XREG = 0
WBASE = 49152
WS_ = 24576
EX = 147712
STAT = EX; CSL = EX + 640; KV = EX + 1536; SCR = EX + 5632
LDS_TOTAL = EX + 8704
LDS_ALLOC = LDS_TOTAL + 1024
WOB = 49152
OCH = [0, 16384, 32768, 114688]
KA = 131072
RB = 0
UB = 32768
UCH = 4608
XB = EX
ROWP = 544
GRP = 16 * ROWP
KG_GRP = {(0, 0): 0, (0, 1): GRP, (0, 3): 2*GRP, (1, 0): 3*GRP, (1, 1): 4*GRP, (0, 2): 5*GRP,
          (1, 3): 114688, (1, 2): 114688 + GRP}
assert 5*GRP + 9*ROWP <= 49152 and 114688 + GRP + 9*ROWP <= 131072
TT = EX
TT_CH = 4112

S_WS = 8
S_W, S_RP, S_H, S_RB, S_HG, S_CP, S_TAG = 28, 29, 30, 31, 32, 33, 34
S_X0, S_WQKV = 4, 6
S_WO, S_OUT = 64, 66
S_DSK = 68
S_FL = 72
V_LANE, V_J, V_G = 1, 2, 3
V_CS = 176
V_KGP = 186
V_STAMP = 255

class PStamps:
    def __init__(self, on): self.on = on; self.names = []
    def __call__(self, a, name):
        if not self.on: return
        i = len(self.names) if name not in self.names else self.names.index(name)
        if name not in self.names: self.names.append(name)
        a("s_memtime s[98:99]")
        a("s_waitcnt lgkmcnt(0)")
        a(f"v_writelane_b32 v{V_STAMP}, s98, {i}")
    def real(self, a, name):
        if not self.on: return
        i = len(self.names); self.names.append(name)
        a("s_memrealtime s[98:99]")
        a("s_waitcnt lgkmcnt(0)")
        a(f"v_writelane_b32 v{V_STAMP}, s98, {i}")
    def dump(self, a):
        if not self.on: return
        a(f"s_add_u32 s92, s{S_WS}, {WS_STAMP}"); a(f"s_addc_u32 s93, s{S_WS+1}, 0")
        a("s_mov_b32 s94, 0x1000000"); a("s_mov_b32 s95, 0x20000")
        a(f"s_lshl_b32 s96, s2, 3"); a(f"s_add_u32 s96, s96, s{S_W}"); a("s_lshl_b32 s96, s96, 8")
        a(f"v_lshlrev_b32 v4, 2, v{V_LANE}")
        a(f"buffer_store_dword v{V_STAMP}, v4, s[92:95], s96 offen")

def srd(a, base, lo, hi=None, size=None, off=0):
    if off:
        a(f"s_add_u32 s{base}, s{lo}, {off}"); a(f"s_addc_u32 s{base+1}, s{lo+1}, 0")
    else:
        a(f"s_mov_b32 s{base}, s{lo}"); a(f"s_mov_b32 s{base+1}, s{lo+1}")
    a(f"s_mov_b32 s{base+2}, {size}"); a(f"s_mov_b32 s{base+3}, 0x20000")

def signal(a, flag_off_expr_sreg, label):
    a("s_waitcnt vmcnt(0)")
    a("s_barrier")
    a(f"s_cmp_lg_u32 s{S_W}, 0")
    a(f"s_cbranch_scc1 {label}")
    a(f"v_mov_b32 v250, s{S_TAG}")
    a(f"v_mov_b32 v251, s{flag_off_expr_sreg}")
    a("s_mov_b64 exec, 1")
    a(f"buffer_store_dword v250, v251, s[{S_FL}:{S_FL+3}], 0 offen sc1")
    a("s_mov_b64 exec, -1")
    a.label(label)

POLL_MAX = 200000
def wait_flags(a, base_sreg, nflags, label, presleep=0):
    a(f"s_cmp_lg_u32 s{S_W}, 0")
    a(f"s_cbranch_scc1 {label}_D")
    if presleep: a(f"s_sleep {presleep}")
    a(f"v_lshlrev_b32 v250, 7, v{V_LANE}")
    a(f"v_add_u32 v250, s{base_sreg}, v250")
    if nflags == 256:
        for i in range(1, 4): a(f"v_add_u32 v{250+i}, {8192*i}, v250")
    else:
        a(f"s_mov_b64 exec, {hex((1 << nflags) - 1)}")
    a("s_mov_b32 s90, 0")
    a.label(f"{label}_P")
    n = 4 if nflags == 256 else 1
    for i in range(n):
        a(f"buffer_load_dword v{246+i}, v{250+i}, s[{S_FL}:{S_FL+3}], 0 offen sc1")
    a("s_waitcnt vmcnt(0)")
    a(f"v_cmp_eq_u32 vcc, s{S_TAG}, v246")
    if n == 4:
        a(f"v_cmp_eq_u32 s[84:85], s{S_TAG}, v247")
        a(f"v_cmp_eq_u32 s[86:87], s{S_TAG}, v248")
        a(f"v_cmp_eq_u32 s[88:89], s{S_TAG}, v249")
        a("s_and_b64 s[84:85], s[84:85], s[86:87]")
        a("s_and_b64 vcc, vcc, s[88:89]")
        a("s_and_b64 vcc, vcc, s[84:85]")
    a("s_nop 0")
    a("s_cmp_eq_u64 vcc, exec")
    a(f"s_cbranch_scc1 {label}_X")
    a("s_sleep 2")
    a("s_add_u32 s90, s90, 1")
    a(f"s_cmp_lt_u32 s90, {POLL_MAX}")
    a(f"s_cbranch_scc1 {label}_P")
    a.label(f"{label}_X")
    a("s_mov_b64 exec, -1")
    a.label(f"{label}_D")
    a("s_barrier")
```

```python
from pk_common import *
import struct
def fbits(x): return hex(struct.unpack("<I", struct.pack("<f", x))[0])

def cmul(z, x, y, t):
    return [f"v_pk_mul_f32 v[{t}:{t+1}], v[{x}:{x+1}], v[{y}:{y+1}] op_sel:[0,0] op_sel_hi:[0,1]",
            f"v_pk_fma_f32 v[{z}:{z+1}], v[{x}:{x+1}], v[{y}:{y+1}], v[{t}:{t+1}] op_sel:[1,1,0] op_sel_hi:[1,0,1] neg_lo:[1,0,0]"]

def emit_param_loads(a):
    a(f"s_cmp_lt_u32 s{S_W}, 4")
    a("s_cbranch_scc1 KG_NOLD")
    a(f"s_sub_u32 s35, s{S_W}, 4")
    a("s_lshr_b32 s36, s35, 1")
    a("s_and_b32 s35, s35, 1")
    a(f"s_lshl_b32 s37, s{S_CP}, 1")
    a("s_add_u32 s37, s37, s36")
    a("s_lshl_b32 s35, s35, 6")
    a(f"v_add_u32 v11, s35, v{V_LANE}")
    a("s_lshl_b32 s38, s37, 8")
    a("v_lshlrev_b32 v11, 1, v11")
    a("v_add_u32 v11, s38, v11")
    a("s_lshl_b32 s38, s37, 1")
    a("v_mov_b32 v12, s38")
    for i in range(4):
        a(f"global_load_short_d16_hi v{V_KGP+i}, v11, s[{40+2*i}:{41+2*i}]")
    a(f"global_load_short_d16_hi v{V_KGP+4}, v12, s[48:49]")
    a.label("KG_NOLD")

def rr(*streams):
    out = []; n = max(len(s) for s in streams)
    for i in range(n):
        for s in streams:
            if i < len(s): out.append(s[i])
    return out

def emit_kg(a, ST):
    a(f"s_cmp_lt_u32 s{S_W}, 4")
    a("s_cbranch_scc1 KG_P1END")
    a(f"s_sub_u32 s35, s{S_W}, 4")
    a("s_lshr_b32 s79, s35, 1")
    a("s_and_b32 s80, s35, 1")
    a("s_lshl_b32 s35, s80, 6")
    a(f"v_add_u32 v11, s35, v{V_LANE}")
    a("v_lshlrev_b32 v11, 2, v11")
    for kind in range(4):
        a(f"s_mov_b32 s36, {KG_GRP[(1, kind)]}")
        a(f"s_cmp_eq_u32 s79, 0")
        a(f"s_cmov_b32 s36, {KG_GRP[(0, kind)]}")
        a(f"v_add_u32 v{6+kind}, s36, v11")
    a("s_mov_b32 s36, 0x3fb8aa3b")
    a("s_mov_b32 s37, 0x3e22f983")
    LA, AI, CR, CI, DT = (V_KGP + i for i in range(5))
    a(f"v_mul_f32 v14, s36, v{DT}")
    a(f"v_mul_f32 v10, s36, v{LA}")
    a("v_exp_f32 v14, v14")
    a("v_exp_f32 v10, v10")
    a("v_cvt_pk_bf16_f32 v15, v14, v10")
    a("v_lshlrev_b32 v14, 16, v15")
    a("v_and_b32 v10, 0xffff0000, v15")
    a("v_mul_f32 v10, v10, v14")
    a(f"v_mul_f32 v11, v{AI}, v14")
    a("v_add_f32 v14, v14, v14")
    a(f"v_mul_f32 v16, v{CR}, v14")
    a(f"v_mul_f32 v17, v{CI}, v14")
    a("v_mul_f32 v10, s36, v10")
    a("v_mul_f32 v11, s37, v11")
    E1, E8, E128, C = 20, 22, 24, 16
    an = []
    for k, (p, r) in enumerate(((1.0, E1), (8.0, E8), (128.0, E128))):
        m, th = 26 + 2*k, 27 + 2*k
        an.append([f"v_mul_f32 v{m}, {fbits(p)}, v10", f"v_mul_f32 v{th}, {fbits(p)}, v11", f"v_exp_f32 v{m}, -v{m}",
                   f"v_fract_f32 v{th}, v{th}", f"v_cos_f32 v{r}, v{th}", f"v_sin_f32 v{r+1}, v{th}",
                   f"v_mul_f32 v{r}, v{r}, v{m}", f"v_mul_f32 v{r+1}, v{r+1}, v{m}"])
    for x in rr(*an): a(x)
    tc = {}
    def W(row, reg, negim, pool=0):
        kind = row >> 4; rloc = row & 15
        tc[pool] = tc.get(pool, 0) + 1
        t = 112 + 2*pool + (tc[pool] & 1)
        return [f"v_cvt_pk_bf16_f32 v{t}, v{reg}, {'-' if negim else ''}v{reg+1}",
                f"ds_write_b32 v{6+kind}, v{t} offset:{rloc*ROWP}"]
    A = ["v_mov_b32 v32, 1.0", "v_mov_b32 v33, 0"] + W(48, 32, False) + W(49, E8, False)
    cur, nxt = 34, 36
    A += cmul(cur, E8, E8, 38) + W(50, cur, False)
    for j in range(3, 16):
        A += cmul(nxt, cur, E8, 38) + W(48 + j, nxt, False); cur, nxt = nxt, cur
    Q = {0: C}; B = W(0, C, True, 1)
    for aa in range(1, 17):
        Q[aa] = 40 + 2*aa
        B += cmul(Q[aa], Q[aa-1], E128, 40)
        row = {1: 8, 2: 16, 3: 20, 4: 24, 5: 26, 6: 28, 7: 30}.get(aa, 32 + aa - 8)
        B += W(row, Q[aa], True, 1)
    Pw = {1: E1}; Cs = []
    for b in range(2, 8):
        Pw[b] = 76 + 2*b
        Cs += cmul(Pw[b], Pw[b-1], E1, 76)
    for x in rr(A, B, Cs): a(x)
    prods = []
    for aa in range(2):
        for b in range(1, 8): prods.append((8*aa + b, aa, b))
    for aa in (2, 3):
        for i in range(1, 4): prods.append((16 + 4*(aa-2) + i, aa, 2*i))
    for aa in range(4, 8): prods.append((16 + 8 + 2*(aa-4) + 1, aa, 4))
    st = [[], [], [], []]
    for i, (row, aa, b) in enumerate(prods):
        k = i % 4
        z, t = 96 + 4*k, 98 + 4*k
        st[k] += cmul(z, Q[aa], Pw[b], t) + W(row, z, True, 2 + k)
    for x in rr(*st): a(x)
    a.label("KG_P1END")
    a("s_waitcnt lgkmcnt(0)")
    a("s_barrier")
    ST(a, "kg_tab")
    a(f"s_cmp_lt_u32 s{S_W}, 4")
    a("s_cbranch_scc1 KG_JOIN")
    a(f"v_mul_u32_u24 v9, {ROWP}, v{V_J}")
    a(f"v_lshlrev_b32 v31, 4, v{V_G}")
    a("v_add_u32 v9, v9, v31")
    for kind in range(4):
        a(f"s_mov_b32 s36, {KG_GRP[(1, kind)]}")
        a(f"s_cmp_eq_u32 s79, 0")
        a(f"s_cmov_b32 s36, {KG_GRP[(0, kind)]}")
        a(f"v_add_u32 v{4+kind}, s36, v9")
    for s in range(8): a(f"ds_read_b128 v[{64+4*s}:{67+4*s}], v7 offset:{64*s}")
    a(f"s_mul_i32 s38, s79, {TT_CH}")
    a(f"s_add_u32 s38, s38, {TT}")
    a("s_cmp_eq_u32 s80, 0")
    a("s_cbranch_scc0 KG_H1")
    for s in range(8): a(f"ds_read_b128 v[{96+4*s}:{99+4*s}], v4 offset:{64*s}")
    for s in range(8): a(f"ds_read_b128 v[{128+4*s}:{131+4*s}], v6 offset:{64*s}")
    for i in range(8): a(f"v_mov_b32 v{40+i}, 0")
    a("s_waitcnt lgkmcnt(0)")
    for s in range(8):
        a(f"v_mfma_f32_16x16x32_bf16 v[40:43], v[{96+4*s}:{99+4*s}], v[{64+4*s}:{67+4*s}], v[40:43]")
        a(f"v_mfma_f32_16x16x32_bf16 v[44:47], v[{128+4*s}:{131+4*s}], v[{64+4*s}:{67+4*s}], v[44:47]")
    a(f"v_lshrrev_b32 v50, 1, v{V_G}")
    a("v_lshlrev_b32 v50, 8, v50")
    a(f"v_and_b32 v51, 1, v{V_G}")
    a("v_lshlrev_b32 v51, 3, v51")
    a("v_add_u32 v50, v50, v51")
    a(f"v_lshlrev_b32 v52, 4, v{V_J}")
    a("v_add_u32 v50, v50, v52")
    a("v_add_u32 v50, s38, v50")
    for r in range(4):
        a(f"v_cvt_pk_bf16_f32 v{54+r}, v{40+r}, v{40+r}")
        a(f"ds_write_b16 v50, v{54+r} offset:{2*r}")
    a(f"v_lshlrev_b32 v50, 10, v{V_G}")
    a("v_add_u32 v50, v50, v52")
    a("v_add_u32 v50, s38, v50")
    for r in range(4): a(f"v_cvt_pk_bf16_f32 v{58+r}, v{44+r}, v{44+r}")
    a(f"v_cmp_gt_u32 vcc, 32, v{V_LANE}")
    a("s_and_saveexec_b64 s[36:37], vcc")
    for r in range(4): a(f"ds_write_b16 v50, v{58+r} offset:{2048 + 256*r}")
    a("s_mov_b64 exec, s[36:37]")
    a(f"v_cmp_eq_u32 vcc, 32, v{V_LANE}")
    a("s_and_saveexec_b64 s[36:37], vcc")
    a("ds_write_b16 v50, v58 offset:2048")
    a("v_mov_b32 v51, 0")
    a("v_mov_b32 v52, s38")
    a("ds_write_b32 v52, v51 offset:4100")
    a("s_mov_b64 exec, s[36:37]")
    a("s_branch KG_JOIN")
    a.label("KG_H1")
    for s in range(8): a(f"ds_read_b128 v[{96+4*s}:{99+4*s}], v5 offset:{64*s}")
    for i in range(4): a(f"v_mov_b32 v{40+i}, 0")
    a(f"v_lshlrev_b32 v52, 4, v{V_J}")
    a("v_add_u32 v52, s38, v52")
    a(f"v_lshlrev_b32 v50, 8, v{V_G}")
    a("v_add_u32 v50, 512, v50")
    a(f"v_lshlrev_b32 v51, 9, v{V_G}")
    a(f"v_cmp_gt_u32 vcc, 32, v{V_LANE}")
    for r in range(4):
        a(f"v_add_u32 v53, {4*r}, v50")
        a(f"v_add_u32 v58, {2*(128*(r>>1) + 4*(r&1))}, v51")
        a("v_cndmask_b32 v53, v58, v53, vcc")
        a(f"v_add_u32 v{60+r}, v53, v52")
    a("s_waitcnt lgkmcnt(0)")
    for s in range(8):
        a(f"v_mfma_f32_16x16x32_bf16 v[40:43], v[{96+4*s}:{99+4*s}], v[{64+4*s}:{67+4*s}], v[40:43]")
    for r in range(4):
        a(f"v_cvt_pk_bf16_f32 v{54+r}, v{40+r}, v{40+r}")
        a(f"ds_write_b16 v{60+r}, v{54+r}")
    a.label("KG_JOIN")
    a("s_waitcnt lgkmcnt(0)")
    a("s_barrier")
    ST(a, "kg_mm")
    a("v_and_b32 v9, 255, v0")
    a("v_lshrrev_b32 v8, 8, v0")
    a("v_lshlrev_b32 v10, 4, v9")
    a("v_sub_u32 v11, 4094, v10")
    for e in range(9):
        a(f"v_subrev_u32 v{20+e}, {2*e}, v11")
    for e in range(9):
        a(f"v_cvt_f32_i32 v{20+e}, v{20+e}")
    for e in range(0, 10, 2):
        if e + 1 < 9:
            a(f"v_cvt_pk_bf16_f32 v{30+e//2}, v{20+e}, v{20+e+1}")
        else:
            a(f"v_cvt_pk_bf16_f32 v{30+e//2}, v{20+e}, v{20+e}")
    for e in range(0, 10, 2):
        a(f"v_lshlrev_b32 v{20+e}, 16, v{30+e//2}")
        if e + 1 < 9: a(f"v_and_b32 v{20+e+1}, 0xffff0000, v{30+e//2}")
    for e in range(9): a(f"v_cvt_u32_f32 v{20+e}, v{20+e}")
    a("v_mov_b32 v31, 4100")
    a("v_cmp_eq_u32 vcc, 255, v9")
    a("v_cndmask_b32 v28, v28, v31, vcc")
    a(f"v_mul_u32_u24 v12, {TT_CH}, v8")
    a(f"v_add_u32 v12, {TT}, v12")
    for e in range(9): a(f"v_add_u32 v{20+e}, v{20+e}, v12")
    for e in range(9): a(f"ds_read_u16 v{40+e}, v{20+e}")
    a(f"v_mul_u32_u24 v13, {KT_CH}, v8")
    a("v_add_u32 v13, v13, v10")
    a(f"v_add_u32 v14, {KA}, v13")
    srd(a, 36, S_WS, size=512*KT_CH, off=WS_KT)
    a(f"s_mul_i32 s40, s{S_CP}, {2*KT_CH}")
    a("s_waitcnt lgkmcnt(0)")
    for d in range(4):
        a(f"v_lshl_or_b32 v{72+d}, v{40+2*d+2}, 16, v{40+2*d+1}")
        a(f"v_lshl_or_b32 v{76+d}, v{40+2*d+1}, 16, v{40+2*d}")
    a("ds_write_b128 v14, v[72:75]")
    a(f"ds_write_b128 v14, v[76:79] offset:{KT_PAR}")
    a("buffer_store_dwordx4 v[72:75], v13, s[36:39], s40 offen")
    a(f"s_add_u32 s41, s40, {KT_PAR}")
    a("buffer_store_dwordx4 v[76:79], v13, s[36:39], s41 offen")
    a("v_cmp_gt_u32 vcc, 16, v0")
    a("s_and_saveexec_b64 s[42:43], vcc")
    a("v_lshrrev_b32 v12, 2, v0")
    a(f"v_mul_u32_u24 v12, {KT_PAR}, v12")
    a("v_and_b32 v13, 3, v0")
    a("v_lshlrev_b32 v13, 4, v13")
    a("v_add_u32 v12, v12, v13")
    a("v_add_u32 v12, 4096, v12")
    for i in range(4): a(f"v_mov_b32 v{90+i}, 0")
    a("buffer_store_dwordx4 v[90:93], v12, s[36:39], s40 offen")
    a(f"v_add_u32 v12, {KA}, v12")
    a("ds_write_b128 v12, v[90:93]")
    a("s_mov_b64 exec, s[42:43]")
    a("s_waitcnt lgkmcnt(0)")
```

```python
import sys
from pk_common import *
import pk_a1, pk_a2, pk_b, pk_kg
NAME = "interleave_layers__sliding_local_dilated__ssm_conv_s4d__prompt"
KN = NAME + "_kernel"

def kt_prefetch(a, P):
    srd(a, 36, S_WS, size=512*KT_CH, off=WS_KT)
    a(f"s_mul_i32 s40, s{S_CP}, {2*KT_CH}")
    a(f"v_lshlrev_b32 v6, 4, v{V_LANE}")
    a(f"s_lshl_b32 s41, s{S_W}, 10")
    for i in range(2):
        a(f"s_add_u32 m0, s41, {KA + i*8192}")
        a(f"s_add_u32 s42, s40, s41")
        if i: a("s_add_u32 s42, s42, 8192")
        a("buffer_load_dwordx4 v6, s[36:39], s42 offen lds")
    a(f"s_cmp_lg_u32 s{S_W}, 7")
    a(f"s_cbranch_scc1 {P}_NK")
    a(f"s_mov_b32 m0, {KA + 16384}")
    a("s_add_u32 s42, s40, 16384")
    a("s_mov_b64 exec, 0xffff")
    a("buffer_load_dwordx4 v6, s[36:39], s42 offen lds")
    a("s_mov_b64 exec, -1")
    a.label(f"{P}_NK")

def gen(stamps=False):
    a = Asm(); ST = PStamps(stamps)
    a.raw(kernel_header(KN))
    a("s_cmp_ge_u32 s2, 256")
    a("s_cbranch_scc1 PK_END")
    a(f"s_load_dwordx4 s[4:7], s[0:1], {KA_X}")
    a(f"s_load_dwordx2 s[{S_WS}:{S_WS+1}], s[0:1], {KA_WS}")
    a(f"s_load_dwordx8 s[40:47], s[0:1], {KA_LOGA}")
    a(f"s_load_dwordx4 s[48:51], s[0:1], {KA_LOGDT}")
    a(f"s_load_dwordx2 s[{S_WO}:{S_WO+1}], s[0:1], {KA_WO}")
    a(f"s_load_dwordx2 s[{S_OUT}:{S_OUT+1}], s[0:1], {KA_OUT}")
    a(f"v_and_b32 v{V_LANE}, 63, v0")
    a("v_lshrrev_b32 v11, 6, v0")
    a("s_and_b32 s35, s2, 7")
    a(f"v_readfirstlane_b32 s{S_W}, v11")
    a("s_lshr_b32 s36, s2, 3")
    a(f"s_lshr_b32 s{S_RB}, s35, 1")
    a(f"s_lshl_b32 s{S_RB}, s{S_RB}, 3")
    a("s_and_b32 s37, s36, 7")
    a(f"s_add_u32 s{S_RB}, s{S_RB}, s37")
    a(f"s_and_b32 s{S_HG}, s35, 1")
    a(f"s_lshl_b32 s{S_HG}, s{S_HG}, 2")
    a("s_lshr_b32 s37, s36, 3")
    a(f"s_add_u32 s{S_HG}, s{S_HG}, s37")
    a(f"s_lshl_b32 s{S_CP}, s35, 5")
    a(f"s_add_u32 s{S_CP}, s{S_CP}, s36")
    a(f"v_and_b32 v{V_J}, 15, v{V_LANE}")
    a(f"v_lshrrev_b32 v{V_G}, 4, v{V_LANE}")
    a(f"s_lshr_b32 s{S_RP}, s{S_W}, 2")
    a(f"s_and_b32 s{S_H}, s{S_W}, 3")
    if stamps: a(f"v_mov_b32 v{V_STAMP}, 0")
    ST.real(a, "real_start"); ST(a, "start")
    a("s_waitcnt lgkmcnt(0)")
    a(f"s_load_dword s{S_TAG}, s[{S_WS}:{S_WS+1}], {WS_EPOCH}")
    a(f"s_lshl_b32 s35, s{S_CP}, 2")
    a(f"s_load_dword s{S_DSK}, s[50:51], s35")
    pk_kg.emit_param_loads(a)
    pk_a1.emit_setup_dma(a, 0)
    srd(a, 12, S_X0, size=0x200000)
    srd(a, 16, S_WQKV, size=0x180000)
    ST(a, "a1l0_issue")
    pk_a1.emit_prologue_dma(a, 0, "A1L0")
    a(f"s_cmp_lg_u32 s{S_W}, 7")
    a("s_cbranch_scc1 PK_NOZ")
    srd(a, 24, S_WS, size=0x8000, off=WS_STATS0)
    a(f"v_lshrrev_b32 v11, 3, v{V_LANE}")
    a("v_lshlrev_b32 v11, 13, v11")
    a(f"v_and_b32 v12, 7, v{V_LANE}")
    a("v_lshlrev_b32 v12, 2, v12")
    a("v_add_u32 v11, v11, v12")
    a(f"s_lshl_b32 s35, s{S_RB}, 8"); a(f"s_lshl_b32 s36, s{S_HG}, 5"); a("s_add_u32 s35, s35, s36")
    a("v_mov_b32 v12, 0")
    a("s_mov_b64 exec, 0xffffffff")
    a("s_mov_b32 exec_hi, 0")
    a("buffer_store_dword v12, v11, s[24:27], s35 offen sc1")
    a("s_mov_b64 exec, -1")
    a.label("PK_NOZ")
    pk_a1.emit_setup_rest(a, 0, "A1L0")
    pk_a2.emit_wo_setup(a)
    srd(a, S_FL, S_WS, size=FL_SIZE, off=WS_FL)
    a("s_waitcnt lgkmcnt(0)")
    a(f"s_add_u32 s{S_TAG}, s{S_TAG}, 1")
    for layer in range(2):
        P1, P2, PB = f"A1L{layer}", f"A2L{layer}", f"BL{layer}"
        pk_a1.emit_body(a, layer, P1, ST, None)
        ST(a, f"a1l{layer}_done")
        a(f"s_lshl_b32 s82, s{S_RB}, 3"); a(f"s_add_u32 s82, s82, s{S_HG}"); a("s_lshl_b32 s82, s82, 7")
        a(f"s_add_u32 s82, s82, {FL_H1[layer]}")
        signal(a, 82, f"H1S{layer}")
        ST(a, f"h1l{layer}_sig")
        for g in pk_a2.wo_dma_groups():
            for x in g: a(x)
        if layer == 0: pk_kg.emit_kg(a, ST)
        else: kt_prefetch(a, "KTP")
        pk_a2.emit_setup(a, layer)
        a("s_waitcnt vmcnt(0) lgkmcnt(0)")
        ST(a, f"h1l{layer}_win")
        a(f"s_lshl_b32 s82, s{S_RB}, 10"); a(f"s_add_u32 s82, s82, {FL_H1[layer]}")
        wait_flags(a, 82, 8, f"H1W{layer}", presleep=(0 if layer == 0 else 8))
        ST(a, f"h1l{layer}_go")
        pk_a2.emit_body(a, layer, P2, ST)
        ST(a, f"a2l{layer}_done")
        a("s_lshl_b32 s82, s2, 7"); a(f"s_add_u32 s82, s82, {FL_H2[layer]}")
        signal(a, 82, f"H2S{layer}")
        ST(a, f"h2l{layer}_sig")
        if layer == 0:
            pk_a1.emit_setup_dma(a, 1)
            srd(a, 16, S_WQKV, size=0x180000)
            for c in range(3):
                for g in pk_a1.w_dma(c):
                    for x in g: a(x)
        pk_b.emit_setup(a, layer)
        a("s_waitcnt lgkmcnt(0)")
        a(f"s_mov_b32 s82, {FL_H2[layer]}")
        wait_flags(a, 82, 256, f"H2W{layer}", presleep=12)
        ST(a, f"h2l{layer}_go")
        pk_b.emit_body(a, layer, PB, ST)
        ST(a, f"bl{layer}_done")
        if layer == 0:
            a("s_lshl_b32 s82, s2, 7"); a(f"s_add_u32 s82, s82, {FL_H3}")
            signal(a, 82, "H3S")
            ST(a, "h3_sig")
            pk_a1.emit_setup_dma(a, 1)
            pk_a1.emit_setup_rest(a, 1, "A1L1")
            pk_a2.emit_wo_setup(a)
            srd(a, 12, S_WS, size=0x200000, off=WS_X2T)
            srd(a, 16, S_WQKV, size=0x180000)
            a(f"s_mov_b32 s82, {FL_H3}")
            wait_flags(a, 82, 256, "H3W", presleep=8)
            ST(a, "h3_go")
            pk_a1.emit_prologue_dma(a, 1, "A1L1")
    a("s_cmp_lg_u32 s2, 0")
    a("s_cbranch_scc1 PK_FIN")
    a(f"s_cmp_lg_u32 s{S_W}, 0")
    a("s_cbranch_scc1 PK_FIN")
    a(f"v_mov_b32 v4, s{S_TAG}")
    a("v_mov_b32 v5, 0")
    a("s_mov_b64 exec, 1")
    a(f"global_store_dword v5, v4, s[{S_WS}:{S_WS+1}] sc1")
    a("s_mov_b64 exec, -1")
    a.label("PK_FIN")
    if stamps:
        a("s_waitcnt vmcnt(0)")
        ST(a, "end"); ST.real(a, "real_end")
        ST.dump(a)
    a.label("PK_END")
    a("s_endpgm")
    return a.text(), kernel_desc(KN, 256, 102), ST.names

def write(path, stamps=False):
    t, d, names = gen(stamps)
    HEAD = open(f"cdna_kernels/{NAME}.s.ref").read().split("; Override launch")[0]
    s = HEAD + f"; @launch grid=(256,1,1) block=(512,1,1) lds={LDS_ALLOC}\n"
    s += '.amdgcn_target "amdgcn-amd-amdhsa--gfx950"\n.text\n' + t + '.section .rodata,"a"\n.p2align 6\n' + d
    open(path, "w").write(s)
    if stamps: open(path + ".names", "w").write("\n".join(names))
if __name__ == "__main__":
    mode = sys.argv[1]
    if mode == "final": write(f"cdna_kernels/{NAME}.s")
    elif mode == "plain": write("pk.s")
    else:
        if len(sys.argv) > 2: pk_a1.EXPERIMENT = sys.argv[2]
        write("pk_st.s", True)
```
